```python
import torch

def _softmax(x, axis=-1):
    return torch.softmax(x, dim=axis)
def _gelu(x):
    return torch.nn.functional.gelu(x, approximate="tanh")
def _silu(x):
    return torch.nn.functional.silu(x)
def _sigmoid(x):
    return torch.sigmoid(x)
def _layernorm(x, axis=-1, eps=1e-5):
    m = x.mean(dim=axis, keepdim=True)
    v = x.var(dim=axis, keepdim=True, unbiased=False)
    return (x - m) / torch.sqrt(v + eps)
def _scatter_add(tgt, idx, src, axis=0):
    return tgt.clone().index_add_(axis, idx, src)
def _segment_sum(src, seg, n):
    out = torch.zeros((n,) + src.shape[1:], dtype=src.dtype)
    return out.index_add_(0, seg, src)
def _pad(x, pw):
    flat = tuple(v for pair in reversed(pw) for v in pair)
    return torch.nn.functional.pad(x, flat)

kernel_name = 'standalone__paged_block_table_kv_radixattention__decode'

def setup_inputs():

    _w = (lambda a: (lambda t: t.to(torch.bfloat16) if t.is_floating_point() else t)(torch.as_tensor(a)))
    B, H, Hkv, Dh = 8, 32, 8, 128
    Lk = 8192
    bs = 16
    nb = max(2, Lk // bs)
    P = max(1, nb // 2)
    n_phys = P + B * (nb - P)
    shared = torch.arange(P, dtype=torch.int64)
    priv = P + torch.arange(B * (nb - P), dtype=torch.int64).reshape(B, nb - P)
    bt = torch.cat([torch.tile(shared[None, :], (B, 1)), priv], dim=1)
    ctx = nb * bs - (torch.arange(1, B + 1, dtype=torch.int64) * 2654435761) % max(1, (nb * bs - P * bs) // 2)
    return {
        "q": _w((lambda *s: torch.randn(*s, dtype=torch.bfloat16) * 0.8)(B, H, Dh)),
        "k_cache": _w((lambda *s: torch.randn(*s, dtype=torch.bfloat16) * 0.8)(n_phys, bs, Hkv, Dh)),
        "v_cache": _w((lambda *s: torch.randn(*s, dtype=torch.bfloat16) * 0.05)(n_phys, bs, Hkv, Dh)),
        "block_table": _w(bt.to(torch.int64)),
        "ctx_lens": _w(torch.as_tensor(ctx).to(torch.int64)),
    }

def reference(q, k_cache, v_cache, block_table, ctx_lens):
    B, H, Dh = q.shape
    n_phys, bs, Hkv, _ = k_cache.shape
    nb = block_table.shape[1]
    Lk = nb * bs
    rep = H // Hkv
    k = k_cache[block_table].reshape(B, Lk, Hkv, Dh)
    v = v_cache[block_table].reshape(B, Lk, Hkv, Dh)
    k = (lambda x, n, axis: torch.repeat_interleave(x, n, dim=axis))(k, rep, axis=2)
    v = (lambda x, n, axis: torch.repeat_interleave(x, n, dim=axis))(v, rep, axis=2)
    scores = torch.einsum("bhd,bkhd->bhk", q, k) * (Dh ** -0.5)
    pos = torch.arange(Lk)
    valid = pos[None, :] < ctx_lens[:, None]
    scores = torch.where(valid[:, None, :], scores, -1e9)
    p = _softmax(scores, axis=-1)
    return torch.einsum("bhk,bkhd->bhd", p, v)
```

```python
import sys, math
NAME = "standalone__paged_block_table_kv_radixattention__decode"

def gen(D=4, HM=0, stamps=False, compute=True, ldpol="nt", epilogue=True):
    o = []
    def e(s): o.append("    " + s)
    def lab(s): o.append(s + ":")
    def c(s): o.append("    ; " + s)

    RS = 16896
    ML = 8 * RS
    TAB = ML + 2048
    PSL = TAB + 16384
    LDS = PSL + 64
    KVB = 75497472
    CSC = math.log2(math.e) / math.sqrt(128.0)
    import struct
    def f2u(f): return struct.unpack("<I", struct.pack("<f", f))[0]

    sW, sH, sS = 3, 4, 5
    sK, sKD, sN = 6, 7, 8
    sP, sSH, sL, sU0, sU1 = 9, 10, 11, 12, 13
    sC = 14
    sLDSB = 15
    sCTX = 32
    sKR, sVR, sR1, sR2 = 40, 44, 48, 52
    sOFF = 56
    sCB = 65
    sT0, sSEG, sINFO, sOFFN = 73, 74, 75, 76
    sPLO, sPHI = 77, 78
    sT = 79
    sMASK = 80
    sPAT = 82
    sC0 = 84
    sCM, sEXP, sLO, sHI = 92, 93, 94, 95
    sT2 = 96
    sG0, sG1 = 98, 99
    sT3 = 100
    sST = 101
    vLANE = 1
    vKD = 2
    vVO = 6
    vKA = 8
    vUOFF, vINFO = 12, 13
    vCT = 14
    vNINF = 16
    vM = 17
    vLS = 19
    vT, vAL, vT2 = 21, 22, 24
    vMC, vREL, vMN = 25, 26, 27
    vP = 28
    vX, vY = 30, 31
    vS = 32
    vKF = 36
    vVT = 52
    vQ = 68
    vO = 100
    vVS = 164
    NV = vVS + 16 * D
    vSX, vSY = NV, NV + 1
    if stamps: NV += 2

    def stamp(idx):
        if not stamps: return
        e(f"s_memrealtime s[{sT2}:{sT2+1}]")
        e(f"s_waitcnt lgkmcnt(0)")
        e(f"v_mov_b32 v{vSX}, s{sT2}")
        e(f"v_mov_b32 v{vSY}, s{sST}")
        e(f"global_store_dword v{vSY}, v{vSX}, s[30:31] offset:{idx*4}")

    hdr = open(f"cdna_kernels/{NAME}.s.ref").read().split("\n")
    for ln in hdr:
        if ln.startswith("; @launch"): break
        o.append(ln)
    o.append(f"; @launch grid=(256,1,1) block=(512,1,1) lds={LDS}")
    o.append('.amdgcn_target "amdgcn-amd-amdhsa--gfx950"')
    o.append(".text")
    o.append(f".globl {NAME}_kernel")
    o.append(".p2align 8")
    o.append(f".type {NAME}_kernel,@function")
    lab(f"{NAME}_kernel")
    e("s_cmp_ge_u32 s2, 256")
    e("s_cbranch_scc1 L_end")
    e("s_load_dwordx16 s[16:31], s[0:1], 0")
    e(f"v_and_b32 v{vLANE}, 63, v0")
    e(f"v_lshrrev_b32 v{vT}, 6, v0")
    e(f"v_lshlrev_b32 v{vX}, 2, v0")
    e(f"v_readfirstlane_b32 s{sW}, v{vT}")
    if HM == 0:
        e(f"s_and_b32 s{sH}, s2, 7")
        e(f"s_lshr_b32 s{sS}, s2, 3")
    else:
        e(f"s_lshr_b32 s{sH}, s2, 3")
        e(f"s_and_b32 s{sH}, s{sH}, 7")
        e(f"s_and_b32 s{sS}, s2, 7")
        e(f"s_lshr_b32 s{sT}, s2, 6")
        e(f"s_lshl_b32 s{sT}, s{sT}, 3")
        e(f"s_add_u32 s{sS}, s{sS}, s{sT}")
    e(f"v_add_u32 v{vY}, 0x1000, v{vX}")
    e(f"v_add_u32 v{vT}, 0x2000, v{vX}")
    e(f"v_add_u32 v{vT2}, 0x3000, v{vX}")
    e(f"s_mov_b32 s{sR1+2}, 16384")
    e(f"s_mov_b32 s{sR1+3}, 0x00020000")
    e(f"s_mov_b32 s{sR2+2}, 65536")
    e(f"s_mov_b32 s{sR2+3}, 0x00020000")
    e(f"s_mov_b32 s{sKR+2}, {KVB}")
    e(f"s_mov_b32 s{sKR+3}, 0x00020000")
    e(f"s_mov_b32 s{sVR+2}, {KVB}")
    e(f"s_mov_b32 s{sVR+3}, 0x00020000")
    e("s_waitcnt lgkmcnt(0)")
    c("block table loads -> v[36:43]")
    e(f"s_mov_b32 s{sR1}, s22")
    e(f"s_mov_b32 s{sR1+1}, s23")
    e(f"s_load_dwordx8 s[{sCTX}:{sCTX+7}], s[24:25], 0")
    vTB = vKF
    for b in range(8):
        va = [vX, vY, vT, vT2][b >> 1]
        e(f"buffer_load_dword v{vTB+b}, v{va}, s[{sR1}:{sR1+3}], 0 offen offset:{(b&1)*2048}")
    if stamps:
        e(f"s_lshl_b32 s{sST}, s2, 3")
        e(f"s_add_u32 s{sST}, s{sST}, s{sW}")
        e(f"s_lshl_b32 s{sST}, s{sST}, 5")
        e(f"s_add_u32 s{sST}, s{sST}, {301989888 - (1<<20)}")
    c("Q loads")
    e(f"s_mov_b32 s{sR2}, s16")
    e(f"s_mov_b32 s{sR2+1}, s17")
    vRow, vG = vVT, vVT + 1
    t0, t1, t2 = vVT + 2, vVT + 3, vVT + 4
    e(f"v_and_b32 v{vRow}, 15, v{vLANE}")
    e(f"v_lshrrev_b32 v{vG}, 4, v{vLANE}")
    e(f"v_lshrrev_b32 v{t0}, 2, v{vRow}")
    e(f"v_and_b32 v{t1}, 3, v{vRow}")
    e(f"v_lshlrev_b32 v{t2}, 13, v{t0}")
    e(f"v_lshl_add_u32 v{t2}, v{t1}, 8, v{t2}")
    e(f"v_lshl_add_u32 v{t2}, v{vG}, 4, v{t2}")
    e(f"s_lshl_b32 s{sT}, s{sH}, 10")
    e(f"s_add_u32 s{sT3}, s{sT}, 32768")
    for G in range(2):
        for s in range(4):
            so = sT if G == 0 else sT3
            e(f"buffer_load_dwordx4 v[{vQ+G*16+s*4}:{vQ+G*16+s*4+3}], v{t2}, s[{sR2}:{sR2+3}], s{so} offen offset:{s*64}")
    c("ctx per row (global load, 4*(row>>2) + 16G)")
    e(f"v_lshlrev_b32 v{t0}, 2, v{t0}")
    e(f"global_load_dword v{vCT}, v{t0}, s[24:25]")
    e(f"global_load_dword v{vCT+1}, v{t0}, s[24:25] offset:16")
    c("K/V SRDs + lane constants")
    e(f"s_mov_b32 s{sKR}, s18")
    e(f"s_mov_b32 s{sKR+1}, s19")
    e(f"s_mov_b32 s{sVR}, s20")
    e(f"s_mov_b32 s{sVR+1}, s21")
    e(f"s_mov_b32 s{sC}, 0x{f2u(CSC):08x}")
    e(f"s_mov_b32 s{sPLO}, 0x05040100")
    e(f"s_mov_b32 s{sPHI}, 0x07060302")
    e(f"s_mov_b32 s{sPAT}, 0x000F000F")
    e(f"s_mov_b32 s{sPAT+1}, 0x000F000F")
    e(f"s_mul_i32 s{sLDSB}, s{sW}, {RS}")
    e(f"s_lshl_b32 s{sT}, s{sH}, 8")
    e(f"v_lshlrev_b32 v{vVO}, 13, v{vG}")
    e(f"v_lshl_add_u32 v{vVO}, v{vRow}, 4, v{vVO}")
    e(f"v_add_u32 v{vVO}, s{sT}, v{vVO}")
    e(f"v_add_u32 v{vVO+1}, 0x1000, v{vVO}")
    for i in range(4):
        e(f"v_add_u32 v{t0}, {4*i}, v{vG}")
        e(f"v_xor_b32 v{t1}, v{t0}, v{vRow}")
        e(f"v_lshlrev_b32 v{t1}, 4, v{t1}")
        e(f"v_lshl_add_u32 v{t1}, v{t0}, 11, v{t1}")
        e(f"v_add_u32 v{t1}, s{sT}, v{t1}")
        e(f"v_subrev_u32 v{vKD+i}, {i*1024}, v{t1}")
    for s in range(4):
        e(f"v_add_u32 v{t0}, {4*s}, v{vG}")
        e(f"v_xor_b32 v{t0}, v{t0}, v{vRow}")
        e(f"v_lshlrev_b32 v{t0}, 4, v{t0}")
        e(f"v_lshl_add_u32 v{t0}, v{vRow}, 8, v{t0}")
        e(f"v_add_u32 v{vKA+s}, s{sLDSB}, v{t0}")
    e(f"v_mov_b32 v{vNINF}, 0xff800000")
    e(f"v_mov_b32 v{vM}, 0xf149f2ca")
    e(f"v_mov_b32 v{vM+1}, 0xf149f2ca")
    e(f"v_mov_b32 v{vLS}, 0")
    e(f"v_mov_b32 v{vLS+1}, 0")
    for i in range(64):
        e(f"v_mov_b32 v{vO+i}, 0")
    c("nblk scalars")
    e("s_waitcnt lgkmcnt(0)")
    e(f"s_mov_b32 s{sSH}, 0")
    e(f"s_mov_b32 s{sT3}, 0")
    for b in range(8):
        r = sCTX + b
        e(f"s_cmp_lt_i32 s{r}, 1")
        e(f"s_cselect_b32 s{r}, 8192, s{r}")
        e(f"s_cselect_b32 s{sT3}, 1, s{sT3}")
        e(f"s_min_i32 s{r}, s{r}, 8192")
        e(f"s_add_u32 s{r}, s{r}, 15")
        e(f"s_lshr_b32 s{r}, s{r}, 4")
        e(f"s_max_u32 s{sSH}, s{sSH}, s{r}")
    c("table arrived?")
    e("s_waitcnt vmcnt(10)")
    stamp(0) if False else None
    e(f"v_add_u32 v{vX}, {TAB}, v{vX}")
    for b in range(0, 8, 2):
        e(f"ds_write2st64_b32 v{vX}, v{vTB+b}, v{vTB+b+1} offset0:{b*8} offset1:{(b+1)*8}")
    for b in range(1, 8):
        e(f"v_xor_b32 v{vTB+8+b}, v{vTB}, v{vTB+b}")
    e(f"v_or3_b32 v{vTB+9}, v{vTB+9}, v{vTB+10}, v{vTB+11}")
    e(f"v_or3_b32 v{vTB+12}, v{vTB+12}, v{vTB+13}, v{vTB+14}")
    e(f"v_or3_b32 v{vTB+9}, v{vTB+9}, v{vTB+12}, v{vTB+15}")
    e(f"v_cmp_ne_u32 vcc, 0, v{vTB+9}")
    e(f"s_lshl_b32 s{sT}, s{sW}, 6")
    e(f"s_nop 0")
    e(f"s_ff1_i32_b64 s{sP}, vcc")
    e(f"s_add_u32 s{sP}, s{sP}, s{sT}")
    e(f"s_cmp_eq_u64 vcc, 0")
    e(f"s_cselect_b32 s{sP}, 512, s{sP}")
    e(f"s_lshl_b32 s{sT}, s{sW}, 2")
    e(f"s_add_u32 s{sT}, s{sT}, {PSL}")
    e(f"v_mov_b32 v{vY}, s{sT}")
    e(f"v_mov_b32 v{vT}, s{sP}")
    e(f"ds_write_b32 v{vY}, v{vT}")
    e(f"v_mov_b32 v{vY}, {PSL}")
    e("s_waitcnt lgkmcnt(0)")
    e("s_barrier")
    e(f"ds_read_b128 v[{vKF}:{vKF+3}], v{vY}")
    e(f"ds_read_b128 v[{vKF+4}:{vKF+7}], v{vY} offset:16")
    e("s_waitcnt lgkmcnt(0)")
    e(f"v_min3_u32 v{vKF}, v{vKF}, v{vKF+1}, v{vKF+2}")
    e(f"v_min3_u32 v{vKF+3}, v{vKF+3}, v{vKF+4}, v{vKF+5}")
    e(f"v_min3_u32 v{vKF}, v{vKF}, v{vKF+6}, v{vKF+7}")
    e(f"v_min_u32 v{vKF}, v{vKF}, v{vKF+3}")
    e("s_nop 0")
    e(f"v_readfirstlane_b32 s{sP}, v{vKF}")
    c("plan")
    e(f"s_min_u32 s{sSH}, s{sSH}, s{sP}")
    e(f"s_mov_b32 s{sOFF}, s{sSH}")
    for b in range(8):
        e(f"s_sub_i32 s{sT}, s{sCTX+b}, s{sP}")
        e(f"s_max_i32 s{sT}, s{sT}, 0")
        e(f"s_add_u32 s{sOFF+b+1}, s{sOFF+b}, s{sT}")
        e(f"s_sub_i32 s{sCB+b}, s{sP}, s{sOFF+b}")
        if b: e(f"s_addk_i32 s{sCB+b}, {512*b}")
    sU = sOFF + 8
    e(f"s_add_u32 s{sL}, s{sU}, 31")
    e(f"s_lshr_b32 s{sL}, s{sL}, 5")
    e(f"s_mul_i32 s{sU0}, s{sS}, s{sL}")
    e(f"s_add_u32 s{sU1}, s{sU0}, s{sL}")
    e(f"s_min_u32 s{sU1}, s{sU1}, s{sU}")
    e(f"s_add_u32 s{sT}, s{sU0}, s{sW}")
    vU, vCc = vKF, vKF + 1
    e(f"v_lshlrev_b32 v{vU}, 3, v{vLANE}")
    e(f"v_add_u32 v{vU}, s{sT}, v{vU}")
    e(f"v_mov_b32 v{vCc}, 0")
    for b in range(8):
        e(f"v_cmpx_le_u32 vcc, s{sOFF+b}, v{vU}")
        e(f"v_mov_b32 v{vCc}, s{sCB+b}")
    e("s_mov_b64 exec, -1")
    e(f"v_add_u32 v{vCc}, v{vU}, v{vCc}")
    e(f"v_and_b32 v{vCc}, 4095, v{vCc}")
    e(f"v_lshlrev_b32 v{vX}, 2, v{vCc}")
    e(f"ds_read_b32 v{vY}, v{vX} offset:{TAB}") if TAB < 65536 else (e(f"v_add_u32 v{vX}, {TAB}, v{vX}"), e(f"ds_read_b32 v{vY}, v{vX}"))
    e(f"v_and_b32 v{vINFO}, 511, v{vCc}")
    e(f"v_lshlrev_b32 v{vINFO}, 4, v{vINFO}")
    e(f"v_lshrrev_b32 v{vT}, 9, v{vCc}")
    e(f"v_cmp_gt_u32 vcc, s{sSH}, v{vU}")
    e(f"v_mov_b32 v{vT2}, 8")
    e(f"v_cmp_gt_u32 s[{sT2}:{sT2+1}], s{sU1}, v{vU}")
    e(f"v_cndmask_b32 v{vT}, v{vT}, v{vT2}, vcc")
    e(f"v_lshl_or_b32 v{vINFO}, v{vT}, 16, v{vINFO}")
    e(f"v_mov_b32 v{vT2}, 0x80000000")
    e(f"s_bcnt1_i32_b64 s{sN}, s[{sT2}:{sT2+1}]")
    e("s_waitcnt lgkmcnt(0)")
    e(f"v_lshlrev_b32 v{vY}, 15, v{vY}")
    e(f"v_cndmask_b32 v{vUOFF}, v{vT2}, v{vY}, s[{sT2}:{sT2+1}]")
    e("s_nop 0")

    def issue(d, soff):
        for i in range(4):
            e(f"buffer_load_dwordx4 v[{vVS+d*16+i*4}:{vVS+d*16+i*4+3}], v{vVO+(i>>1)}, s[{sVR}:{sVR+3}], s{soff} offen offset:{(i&1)*2048} {ldpol}")
    def issueK(d, soff):
        for i in range(4):
            e(f"buffer_load_dwordx4 v{vKD+i}, s[{sKR}:{sKR+3}], s{soff} offen offset:{i*1024} {ldpol} lds")

    for d in range(D):
        e(f"v_readlane_b32 s{sC0+d}, v{vUOFF}, {d}")
    e("s_nop 1")
    for d in range(D):
        e(f"s_add_u32 m0, s{sLDSB}, {d*4096}")
        e("s_nop 0")
        issueK(d, sC0 + d)
        issue(d, sC0 + d)
    stamp(0)
    c("off critical path: ctx rows, zero-Q rare path, CM mask")
    e(f"s_waitcnt vmcnt({8*D})")
    e(f"v_lshrrev_b32 v{vT}, 4, v{vLANE}")
    e(f"v_lshlrev_b32 v{vT}, 2, v{vT}")
    e(f"v_mov_b32 v{vT2}, 8192")
    for G in range(2):
        e(f"v_cmp_gt_i32 s[{sC0+2*G}:{sC0+2*G+1}], 1, v{vCT+G}")
        e(f"v_min_i32 v{vCT+G}, v{vT2}, v{vCT+G}")
        e("s_nop 0")
        e(f"v_cndmask_b32 v{vCT+G}, v{vCT+G}, v{vT2}, s[{sC0+2*G}:{sC0+2*G+1}]")
        e(f"v_sub_u32 v{vCT+G}, v{vCT+G}, v{vT}")
    e(f"s_cmp_eq_u32 s{sT3}, 0")
    e("s_cbranch_scc1 L_noz")
    for G in range(2):
        for i in range(16):
            e(f"v_cndmask_b32 v{vQ+G*16+i}, v{vQ+G*16+i}, 0, s[{sC0+2*G}:{sC0+2*G+1}]")
    lab("L_noz")
    e(f"s_mov_b32 s{sLO}, s{sOFF}")
    e(f"s_mov_b32 s{sHI}, s{sOFF+1}")
    for b in range(1, 8):
        e(f"s_cmp_eq_u32 s{sW}, {b}")
        e(f"s_cselect_b32 s{sLO}, s{sOFF+b}, s{sLO}")
        e(f"s_cselect_b32 s{sHI}, s{sOFF+b+1}, s{sHI}")
    vA, vE = vKF, vKF + 1
    e(f"v_mul_lo_u32 v{vA}, v{vLANE}, s{sL}")
    e(f"v_add_u32 v{vE}, s{sL}, v{vA}")
    e(f"v_min_u32 v{vE}, s{sU}, v{vE}")
    e(f"v_cmp_lt_u32 s[{sC0}:{sC0+1}], v{vA}, v{vE}")
    e(f"v_cmp_gt_u32 s[{sC0+2}:{sC0+3}], s{sSH}, v{vA}")
    e(f"v_cmp_gt_u32 s[{sC0+4}:{sC0+5}], s{sHI}, v{vA}")
    e(f"v_cmp_lt_u32 s[{sC0+6}:{sC0+7}], s{sLO}, v{vE}")
    e(f"s_and_b32 s{sC0+4}, s{sC0+4}, s{sC0+6}")
    e(f"s_cmp_lt_u32 s{sLO}, s{sHI}")
    e(f"s_cselect_b32 s{sC0+4}, s{sC0+4}, 0")
    e(f"s_or_b32 s{sC0+2}, s{sC0+2}, s{sC0+4}")
    e(f"s_and_b32 s{sCM}, s{sC0+2}, s{sC0}")
    e(f"s_bcnt1_i32_b32 s{sEXP}, s{sCM}")
    for G, sg in ((0, sG0), (1, sG1)):
        e(f"s_max_u32 s{sT}, s{sU0}, s{sOFF+4*G}")
        e(f"s_min_u32 s{sT3}, s{sU1}, s{sOFF+4*G+4}")
        e(f"s_cmp_lt_u32 s{sT}, s{sT3}")
        e(f"s_cselect_b32 s{sg}, 1, 0")
        e(f"s_cmp_lt_u32 s{sU0}, s{sSH}")
        e(f"s_cselect_b32 s{sg}, 1, s{sg}")
    e(f"s_mov_b32 s{sK}, 0")
    e(f"s_mov_b32 s{sKD}, {D}")
    e(f"s_cmp_eq_u32 s{sN}, 0")
    e("s_cbranch_scc1 L_loopdone")

    def group(G, tag):
        q = vQ + G * 16; O = vO + G * 32; m = vM + G; ls = vLS + G
        for s in range(4):
            cc = "0" if s == 0 else f"v[{vS}:{vS+3}]"
            e(f"v_mfma_f32_16x16x32_bf16 v[{vS}:{vS+3}], v[{vKF+4*s}:{vKF+4*s+3}], v[{q+4*s}:{q+4*s+3}], {cc}")
        e(f"v_subrev_u32 v{vREL}, s{sT0}, v{vCT+G}")
        e(f"v_cndmask_b32 v{vREL}, 0, v{vREL}, s[{sMASK}:{sMASK+1}]")
        for i in range(4):
            e(f"v_cmp_lt_i32 s[{sC0+2*i}:{sC0+2*i+1}], {i}, v{vREL}")
        e("s_nop 1")
        for i in range(4):
            e(f"v_cndmask_b32 v{vS+i}, v{vNINF}, v{vS+i}, s[{sC0+2*i}:{sC0+2*i+1}]")
        e(f"v_max3_f32 v{vT}, v{vS}, v{vS+1}, v{vS+2}")
        e(f"v_max3_f32 v{vT}, v{vT}, v{vS+3}, v{m}")
        e(f"v_mov_b32 v{vT2}, v{vT}")
        e("s_nop 1")
        e(f"v_permlane32_swap_b32 v{vT}, v{vT2}")
        e(f"v_max_f32 v{vT}, v{vT}, v{vT2}")
        e(f"v_mov_b32 v{vT2}, v{vT}")
        e("s_nop 1")
        e(f"v_permlane16_swap_b32 v{vT}, v{vT2}")
        e(f"v_max_f32 v{vMN}, v{vT}, v{vT2}")
        e(f"v_sub_f32 v{vT}, v{m}, v{vMN}")
        e(f"v_mul_f32 v{vMC}, s{sC}, v{vMN}")
        e(f"v_mul_f32 v{vT}, s{sC}, v{vT}")
        e(f"v_exp_f32 v{vAL}, v{vT}")
        for i in range(4):
            e(f"v_fma_f32 v{vS+i}, v{vS+i}, s{sC}, -v{vMC}")
        for i in range(4):
            e(f"v_exp_f32 v{vS+i}, v{vS+i}")
        e(f"v_mov_b32 v{m}, v{vMN}")
        for i in range(16):
            e(f"v_pk_mul_f32 v[{O+2*i}:{O+2*i+1}], v[{O+2*i}:{O+2*i+1}], v[{vAL}:{vAL+1}] op_sel_hi:[1,0]")
        e(f"v_cvt_pk_bf16_f32 v{vP}, v{vS}, v{vS+1}")
        e(f"v_cvt_pk_bf16_f32 v{vP+1}, v{vS+2}, v{vS+3}")
        e(f"v_fma_f32 v{ls}, v{ls}, v{vAL}, v{vS}")
        e(f"v_add_f32 v{vT}, v{vS+1}, v{vS+2}")
        e(f"v_add_f32 v{ls}, v{ls}, v{vS+3}")
        e(f"v_add_f32 v{ls}, v{ls}, v{vT}")
        for ee in range(8):
            e(f"v_mfma_f32_16x16x16_bf16 v[{O+4*ee}:{O+4*ee+3}], v[{vVT+2*ee}:{vVT+2*ee+1}], v[{vP}:{vP+1}], v[{O+4*ee}:{O+4*ee+3}]")

    lab("L_loop")
    for d in range(D):
        c(f"---- stage {d}")
        e(f"v_readlane_b32 s{sOFFN}, v{vUOFF}, s{sKD}")
        e(f"v_readlane_b32 s{sINFO}, v{vINFO}, s{sK}")
        e(f"s_add_u32 m0, s{sLDSB}, {d*4096}")
        e(f"s_waitcnt vmcnt({8*D-8})")
        for s in range(4):
            e(f"ds_read_b128 v[{vKF+4*s}:{vKF+4*s+3}], v{vKA+s} offset:{d*4096}")
        vs = vVS + d * 16
        for q in range(4):
            for hl in range(2):
                sel = sPLO if hl == 0 else sPHI
                ee = 2 * q + hl
                e(f"v_perm_b32 v{vVT+2*ee}, v{vs+4+q}, v{vs+q}, s{sel}")
                e(f"v_perm_b32 v{vVT+2*ee+1}, v{vs+12+q}, v{vs+8+q}, s{sel}")
        issue(d, sOFFN)
        e(f"s_and_b32 s{sT0}, s{sINFO}, 0xffff")
        e(f"s_lshr_b32 s{sSEG}, s{sINFO}, 16")
        e(f"s_and_b32 s{sT}, s{sSEG}, 3")
        e(f"s_lshl_b32 s{sT}, s{sT}, 2")
        e(f"s_lshl_b64 s[{sMASK}:{sMASK+1}], s[{sPAT}:{sPAT+1}], s{sT}")
        e(f"s_cmp_eq_u32 s{sSEG}, 8")
        e(f"s_cselect_b64 s[{sMASK}:{sMASK+1}], -1, s[{sMASK}:{sMASK+1}]")
        e("s_waitcnt lgkmcnt(0)")
        issueK(d, sOFFN)
        if compute:
            e(f"s_bitcmp1_b32 s{sSEG}, 2")
            e(f"s_cbranch_scc1 L_g1_{d}")
            group(0, d)
            e(f"s_cmp_lt_u32 s{sSEG}, 4")
            e(f"s_cbranch_scc1 L_next_{d}")
            lab(f"L_g1_{d}")
            group(1, d)
            lab(f"L_next_{d}")
        e(f"s_add_u32 s{sK}, s{sK}, 1")
        e(f"s_add_u32 s{sKD}, s{sKD}, 1")
        e(f"s_cmp_ge_u32 s{sK}, s{sN}")
        if d < D - 1:
            e("s_cbranch_scc1 L_loopdone")
        else:
            e("s_cbranch_scc0 L_loop")
    lab("L_loopdone")
    stamp(1)
    if not epilogue:
        e("s_branch L_end")
    c("reduce l across g, write m/l and O to LDS")
    for G in range(2):
        ls = vLS + G
        e(f"v_mov_b32 v{vT2}, v{ls}")
        e("s_nop 1")
        e(f"v_permlane32_swap_b32 v{ls}, v{vT2}")
        e(f"v_add_f32 v{ls}, v{ls}, v{vT2}")
        e(f"v_mov_b32 v{vT2}, v{ls}")
        e("s_nop 1")
        e(f"v_permlane16_swap_b32 v{ls}, v{vT2}")
        e(f"v_add_f32 v{ls}, v{ls}, v{vT2}")
    e(f"v_and_b32 v{vX}, 15, v{vLANE}")
    e(f"s_lshl_b32 s{sT}, s{sW}, 8")
    e(f"s_add_u32 s{sT}, s{sT}, {ML}")
    e(f"v_lshlrev_b32 v{vY}, 3, v{vX}")
    e(f"v_add_u32 v{vY}, s{sT}, v{vY}")
    e(f"v_mov_b32 v{vS}, v{vM}")
    e(f"v_mov_b32 v{vS+1}, v{vLS}")
    e(f"v_mov_b32 v{vS+2}, v{vM+1}")
    e(f"v_mov_b32 v{vS+3}, v{vLS+1}")
    e(f"ds_write_b64 v{vY}, v[{vS}:{vS+1}]")
    e(f"ds_write_b64 v{vY}, v[{vS+2}:{vS+3}] offset:128")
    e(f"v_mul_u32_u24 v{vY}, 528, v{vX}")
    e(f"v_lshrrev_b32 v{vT}, 4, v{vLANE}")
    e(f"v_lshl_add_u32 v{vY}, v{vT}, 7, v{vY}")
    e(f"v_add_u32 v{vY}, s{sLDSB}, v{vY}")
    e("s_waitcnt vmcnt(0)")
    e("s_nop 7")
    for G, sg in ((0, sG0), (1, sG1)):
        e(f"s_cmp_eq_u32 s{sg}, 0")
        e(f"s_cbranch_scc1 L_skipw{G}")
        for ee in range(8):
            e(f"ds_write_b128 v{vY}, v[{vO+G*32+4*ee}:{vO+G*32+4*ee+3}] offset:{G*16*528+ee*16}")
        lab(f"L_skipw{G}")
    e("s_waitcnt lgkmcnt(0)")
    e("s_barrier")
    c("wave w combines batch w if touched")
    e(f"s_lshr_b32 s{sT}, s{sCM}, s{sS}")
    e(f"s_bitcmp1_b32 s{sT}, 0")
    e("s_cbranch_scc0 L_end")
    vR = vT
    e(f"v_lshrrev_b32 v{vR}, 4, v{vLANE}")
    e(f"s_lshl_b32 s{sT}, s{sW}, 2")
    e(f"v_add_u32 v{vR}, s{sT}, v{vR}")
    e(f"v_lshlrev_b32 v{vY}, 3, v{vR}")
    e(f"v_add_u32 v{vY}, {ML}, v{vY}")
    e(f"v_mul_u32_u24 v{vT2}, 528, v{vR}")
    e(f"v_lshl_add_u32 v{vT2}, v{vX}, 5, v{vT2}")
    e(f"v_add_u32 v{vMC}, {4*RS}, v{vT2}")
    vML = vKF
    vOO = vO
    for ws in range(8):
        e(f"ds_read_b64 v[{vML+2*ws}:{vML+2*ws+1}], v{vY} offset:{ws*256}")
    for ws in range(8):
        va = vT2 if ws < 4 else vMC
        off = (ws & 3) * RS
        e(f"ds_read_b128 v[{vOO+8*ws}:{vOO+8*ws+3}], v{va} offset:{off}")
        e(f"ds_read_b128 v[{vOO+8*ws+4}:{vOO+8*ws+7}], v{va} offset:{off+16}")
        if ws == 2: e("s_waitcnt lgkmcnt(6)")
    vMM = vMN
    e(f"v_max3_f32 v{vMM}, v{vML}, v{vML+2}, v{vML+4}")
    e(f"v_max3_f32 v{vMM}, v{vMM}, v{vML+6}, v{vML+8}")
    e(f"v_max3_f32 v{vMM}, v{vMM}, v{vML+10}, v{vML+12}")
    e(f"v_max_f32 v{vMM}, v{vMM}, v{vML+14}")
    for ws in range(8):
        e(f"v_sub_f32 v{vML+2*ws}, v{vML+2*ws}, v{vMM}")
        e(f"v_mul_f32 v{vML+2*ws}, s{sC}, v{vML+2*ws}")
        e(f"v_exp_f32 v{vML+2*ws}, v{vML+2*ws}")
    vACC = vVT
    e(f"v_mul_f32 v{vACC+9}, v{vML}, v{vML+1}")
    for ws in range(1, 8):
        e(f"v_fmac_f32 v{vACC+9}, v{vML+2*ws}, v{vML+2*ws+1}")
    e(f"v_mov_b32 v{vACC+8}, v{vMM}")
    e("s_waitcnt lgkmcnt(0)")
    for i in range(8):
        e(f"v_mul_f32 v{vACC+i}, v{vML}, v{vOO+i}")
    for ws in range(1, 8):
        for i in range(8):
            e(f"v_fmac_f32 v{vACC+i}, v{vML+2*ws}, v{vOO+8*ws+i}")
    c("single contributor? skip hand-off")
    e(f"s_mov_b32 s{sR1}, s30")
    e(f"s_mov_b32 s{sR1+1}, s31")
    e(f"s_mov_b32 s{sR1+2}, {8<<20}")
    e(f"s_lshl_b32 s{sT}, s{sH}, 8")
    e(f"s_add_u32 s{sT}, s{sT}, s{sW}")
    e(f"s_lshl_b32 s{sLO}, s{sT}, 12")
    e(f"v_lshlrev_b32 v{vX}, 4, v{vLANE}")
    e(f"v_lshlrev_b32 v{vY}, 3, v{vLANE}")
    e(f"s_cmp_eq_u32 s{sEXP}, 1")
    e("s_cbranch_scc1 L_final")
    e(f"s_lshl_b32 s{sT}, s{sS}, 15")
    e(f"s_add_u32 s{sT}, s{sT}, s{sLO}")
    e(f"buffer_store_dwordx4 v[{vACC}:{vACC+3}], v{vX}, s[{sR1}:{sR1+3}], s{sT} offen sc0 sc1")
    e(f"buffer_store_dwordx4 v[{vACC+4}:{vACC+7}], v{vX}, s[{sR1}:{sR1+3}], s{sT} offen offset:1024 sc0 sc1")
    e(f"buffer_store_dwordx2 v[{vACC+8}:{vACC+9}], v{vY}, s[{sR1}:{sR1+3}], s{sT} offen offset:2048 sc0 sc1")
    e(f"s_lshl_b32 s{sT}, s{sH}, 3")
    e(f"s_add_u32 s{sT}, s{sT}, s{sW}")
    e(f"s_lshl_b32 s{sT}, s{sT}, 2")
    e(f"v_mov_b32 v{vT}, s{sT}")
    e(f"v_mov_b32 v{vT2}, 1")
    e(f"s_mov_b64 exec, 1")
    e("s_waitcnt vmcnt(0)")
    stamp(2)
    e(f"global_atomic_add v{vT2}, v{vT}, v{vT2}, s[28:29] sc0 sc1")
    e("s_waitcnt vmcnt(0)")
    e(f"v_readfirstlane_b32 s{sT}, v{vT2}")
    e(f"s_mov_b64 exec, -1")
    stamp(3)
    e(f"s_add_u32 s{sT}, s{sT}, 1")
    e(f"s_cmp_eq_u32 s{sT}, s{sEXP}")
    e("s_cbranch_scc0 L_end")
    c("last arriver: gather other partials")
    e(f"s_bitset0_b32 s{sCM}, s{sS}")
    NB = 10
    vG0 = vO
    lab("L_gather")
    for i in range(NB):
        e(f"s_ff1_i32_b32 s{sT}, s{sCM}")
        e(f"s_bitset0_b32 s{sCM}, s{sT}")
        e(f"s_lshl_b32 s{sT3}, s{sT}, 15")
        e(f"s_add_u32 s{sT3}, s{sT3}, s{sLO}")
        e(f"s_cmp_lt_i32 s{sT}, 0")
        e(f"s_cselect_b32 s{sT3}, 0x40000000, s{sT3}")
        b0 = vG0 + i * 10
        e(f"buffer_load_dwordx2 v[{b0+8}:{b0+9}], v{vY}, s[{sR1}:{sR1+3}], s{sT3} offen offset:2048 sc0 sc1")
        e(f"buffer_load_dwordx4 v[{b0}:{b0+3}], v{vX}, s[{sR1}:{sR1+3}], s{sT3} offen sc0 sc1")
        e(f"buffer_load_dwordx4 v[{b0+4}:{b0+7}], v{vX}, s[{sR1}:{sR1+3}], s{sT3} offen offset:1024 sc0 sc1")
    e(f"v_mov_b32 v{vT2}, 0xf149f2ca")
    e("s_waitcnt vmcnt(0)")
    e(f"v_mov_b32 v{vMM}, v{vACC+8}")
    for i in range(NB):
        b0 = vG0 + i * 10
        e(f"v_cmp_lt_f32 vcc, 0, v{b0+9}")
        e("s_nop 1")
        e(f"v_cndmask_b32 v{b0+8}, v{vT2}, v{b0+8}, vcc")
        e(f"v_max_f32 v{vMM}, v{vMM}, v{b0+8}")
    e(f"v_sub_f32 v{vT}, v{vACC+8}, v{vMM}")
    e(f"v_mul_f32 v{vT}, s{sC}, v{vT}")
    e(f"v_exp_f32 v{vT}, v{vT}")
    e(f"v_mov_b32 v{vACC+8}, v{vMM}")
    for i in list(range(8)) + [9]:
        e(f"v_mul_f32 v{vACC+i}, v{vT}, v{vACC+i}")
    for i in range(NB):
        b0 = vG0 + i * 10
        e(f"v_sub_f32 v{vT}, v{b0+8}, v{vMM}")
        e(f"v_mul_f32 v{vT}, s{sC}, v{vT}")
        e(f"v_exp_f32 v{vT}, v{vT}")
        e("s_nop 0")
        for j in list(range(8)) + [9]:
            e(f"v_fmac_f32 v{vACC+j}, v{vT}, v{b0+j}")
    e(f"s_cmp_lg_u32 s{sCM}, 0")
    e("s_cbranch_scc1 L_gather")
    lab("L_final")
    e(f"v_rcp_f32 v{vT}, v{vACC+9}")
    e(f"s_mov_b32 s{sR2}, s26")
    e(f"s_mov_b32 s{sR2+1}, s27")
    e(f"v_lshrrev_b32 v{vY}, 4, v{vLANE}")
    e(f"v_lshlrev_b32 v{vY}, 8, v{vY}")
    e(f"v_bfe_u32 v{vX}, v{vLANE}, 2, 2")
    e(f"v_lshl_add_u32 v{vY}, v{vX}, 6, v{vY}")
    e(f"v_and_b32 v{vX}, 3, v{vLANE}")
    e(f"v_lshl_add_u32 v{vY}, v{vX}, 2, v{vY}")
    e(f"s_lshl_b32 s{sT}, s{sW}, 13")
    e(f"s_lshl_b32 s{sT3}, s{sH}, 10")
    e(f"s_add_u32 s{sT}, s{sT}, s{sT3}")
    for i in range(8):
        e(f"v_mul_f32 v{vACC+i}, v{vT}, v{vACC+i}")
    for r in range(4):
        e(f"v_cvt_pk_bf16_f32 v{vACC+r}, v{vACC+r}, v{vACC+4+r}")
    for r in range(4):
        e(f"buffer_store_dword v{vACC+r}, v{vY}, s[{sR2}:{sR2+3}], s{sT} offen offset:{16*r}")
    stamp(4)
    lab("L_end")
    e("s_endpgm")
    o.append('.section .rodata,"a"')
    o.append(".p2align 6")
    o.append(f".amdhsa_kernel {NAME}_kernel")
    o.append(f"  .amdhsa_next_free_vgpr {NV}")
    o.append("  .amdhsa_next_free_sgpr 102")
    o.append(f"  .amdhsa_accum_offset {(NV+3)//4*4}")
    o.append("  .amdhsa_group_segment_fixed_size 0")
    o.append("  .amdhsa_kernarg_size 64")
    o.append("  .amdhsa_user_sgpr_count 2")
    o.append("  .amdhsa_user_sgpr_kernarg_segment_ptr 1")
    o.append("  .amdhsa_system_sgpr_workgroup_id_x 1")
    o.append(".end_amdhsa_kernel")
    return "\n".join(o) + "\n"

if __name__ == "__main__":
    kw = {}
    out = sys.argv[1]
    for a in sys.argv[2:]:
        k, v = a.split("=")
        kw[k] = v if k == "ldpol" else int(v)
    open(out, "w").write(gen(**kw))
```

```python
import sys, math
NAME = "standalone__paged_block_table_kv_radixattention__decode"

def gen(D=4, HM=0, stamps=False, compute=True, ldpol="nt", epilogue=True, kpol=None, dbgt=0):
    o = []
    if kpol is None: kpol = ldpol
    def e(s): o.append("    " + s)
    def lab(s): o.append(s + ":")
    def c(s): o.append("    ; " + s)

    RS = 16896
    ML = 8 * RS
    TAB = ML + 2048
    PSL = TAB + 16384
    LDS = PSL + 64
    KVB = 75497472
    CSC = math.log2(math.e) / math.sqrt(128.0)
    import struct
    def f2u(f): return struct.unpack("<I", struct.pack("<f", f))[0]

    sW, sH, sS = 3, 4, 5
    sK, sKD, sN = 6, 7, 8
    sP, sSH, sL, sU0, sU1 = 9, 10, 11, 12, 13
    sC = 14
    sLDSB = 15
    sCTX = 32
    sKR, sVR, sR1, sR2 = 40, 44, 48, 52
    sOFF = 56
    sCB = 65
    sT0, sSEG, sINFO, sOFFN = 73, 74, 75, 76
    sPLO, sPHI = 77, 78
    sT = 79
    sMASK = 80
    sPAT = 82
    sC0 = 84
    sCM, sEXP, sLO, sHI = 92, 93, 94, 95
    sT2 = 96
    sG0, sG1 = 98, 99
    sT3 = 100
    sST = 101
    vLANE = 1
    vKD = 2
    vVO = 6
    vKA = 8
    vUOFF, vINFO = 12, 13
    vCT = 14
    vNINF = 16
    vM = 17
    vLS = 19
    vT, vAL, vT2 = 21, 22, 24
    vMC, vREL, vMN = 25, 26, 27
    vP = 28
    vX, vY = 30, 31
    vS = 32
    vKF = 36
    vVT = 52
    vQ = 68
    vO = 100
    vVS = 164
    NV = vVS + 16 * D
    vSX, vSY = NV, NV + 1
    if stamps or dbgt: NV += 2

    def dstamp(word, neg=False):
        if not dbgt: return
        if word < 6:
            e(f"s_and_b32 s{sT2}, s2, 15")
            e(f"s_or_b32 s{sT2}, s{sT2}, s{sW}")
            e(f"s_cmp_lg_u32 s{sT2}, 0")
            e(f"s_cbranch_scc1 L_ds{word}")
        e(f"s_memrealtime s[{sT2}:{sT2+1}]")
        e(f"s_waitcnt lgkmcnt(0)")
        if neg: e(f"s_sub_u32 s{sT2}, 0, s{sT2}")
        e(f"s_mov_b64 s[{sC0}:{sC0+1}], exec")
        e(f"s_mov_b64 exec, 1")
        e(f"v_mov_b32 v{vSX}, s{sT2}")
        e(f"v_mov_b32 v{vSY}, {word*4}")
        e(f"global_atomic_umax v{vSY}, v{vSX}, s[28:29] sc1")
        e(f"s_mov_b64 exec, s[{sC0}:{sC0+1}]")
        lab(f"L_ds{word}")
    def stamp(idx):
        if not stamps: return
        e(f"s_memrealtime s[{sT2}:{sT2+1}]")
        e(f"s_waitcnt lgkmcnt(0)")
        e(f"v_mov_b32 v{vSX}, s{sT2}")
        e(f"v_mov_b32 v{vSY}, s{sST}")
        e(f"global_store_dword v{vSY}, v{vSX}, s[30:31] offset:{idx*4}")

    hdr = open(f"cdna_kernels/{NAME}.s.ref").read().split("\n")
    for ln in hdr:
        if ln.startswith("; @launch"): break
        o.append(ln)
    o.append(f"; @launch grid=(256,1,1) block=(512,1,1) lds={LDS}")
    o.append('.amdgcn_target "amdgcn-amd-amdhsa--gfx950"')
    o.append(".text")
    o.append(f".globl {NAME}_kernel")
    o.append(".p2align 8")
    o.append(f".type {NAME}_kernel,@function")
    lab(f"{NAME}_kernel")
    e("s_cmp_ge_u32 s2, 256")
    e("s_cbranch_scc1 L_end")
    e("s_load_dwordx16 s[16:31], s[0:1], 0")
    e(f"v_and_b32 v{vLANE}, 63, v0")
    e(f"v_lshrrev_b32 v{vT}, 6, v0")
    e(f"v_lshlrev_b32 v{vX}, 2, v0")
    e(f"v_readfirstlane_b32 s{sW}, v{vT}")
    if HM == 0:
        e(f"s_and_b32 s{sH}, s2, 7")
        e(f"s_lshr_b32 s{sS}, s2, 3")
    else:
        e(f"s_lshr_b32 s{sH}, s2, 3")
        e(f"s_and_b32 s{sH}, s{sH}, 7")
        e(f"s_and_b32 s{sS}, s2, 7")
        e(f"s_lshr_b32 s{sT}, s2, 6")
        e(f"s_lshl_b32 s{sT}, s{sT}, 3")
        e(f"s_add_u32 s{sS}, s{sS}, s{sT}")
    e(f"v_add_u32 v{vY}, 0x1000, v{vX}")
    e(f"v_add_u32 v{vT}, 0x2000, v{vX}")
    e(f"v_add_u32 v{vT2}, 0x3000, v{vX}")
    e(f"s_mov_b32 s{sR1+2}, 16384")
    e(f"s_mov_b32 s{sR1+3}, 0x00020000")
    e(f"s_mov_b32 s{sR2+2}, 65536")
    e(f"s_mov_b32 s{sR2+3}, 0x00020000")
    e(f"s_mov_b32 s{sKR+2}, {KVB}")
    e(f"s_mov_b32 s{sKR+3}, 0x00020000")
    e(f"s_mov_b32 s{sVR+2}, {KVB}")
    e(f"s_mov_b32 s{sVR+3}, 0x00020000")
    e("s_waitcnt lgkmcnt(0)")
    dstamp(0, True)
    dstamp(1)
    c("block table loads -> v[36:43]")
    e(f"s_mov_b32 s{sR1}, s22")
    e(f"s_mov_b32 s{sR1+1}, s23")
    e(f"s_load_dwordx8 s[{sCTX}:{sCTX+7}], s[24:25], 0")
    vTB = vKF
    for b in range(8):
        va = [vX, vY, vT, vT2][b >> 1]
        e(f"buffer_load_dword v{vTB+b}, v{va}, s[{sR1}:{sR1+3}], 0 offen offset:{(b&1)*2048}")
    if stamps:
        e(f"s_lshl_b32 s{sST}, s2, 3")
        e(f"s_add_u32 s{sST}, s{sST}, s{sW}")
        e(f"s_lshl_b32 s{sST}, s{sST}, 5")
        e(f"s_add_u32 s{sST}, s{sST}, {301989888 - (1<<20)}")
    c("Q loads")
    e(f"s_mov_b32 s{sR2}, s16")
    e(f"s_mov_b32 s{sR2+1}, s17")
    vRow, vG = vVT, vVT + 1
    t0, t1, t2 = vVT + 2, vVT + 3, vVT + 4
    e(f"v_and_b32 v{vRow}, 15, v{vLANE}")
    e(f"v_lshrrev_b32 v{vG}, 4, v{vLANE}")
    e(f"v_lshrrev_b32 v{t0}, 2, v{vRow}")
    e(f"v_and_b32 v{t1}, 3, v{vRow}")
    e(f"v_lshlrev_b32 v{t2}, 13, v{t0}")
    e(f"v_lshl_add_u32 v{t2}, v{t1}, 8, v{t2}")
    e(f"v_lshl_add_u32 v{t2}, v{vG}, 4, v{t2}")
    e(f"s_lshl_b32 s{sT}, s{sH}, 10")
    e(f"s_add_u32 s{sT3}, s{sT}, 32768")
    for G in range(2):
        for s in range(4):
            so = sT if G == 0 else sT3
            e(f"buffer_load_dwordx4 v[{vQ+G*16+s*4}:{vQ+G*16+s*4+3}], v{t2}, s[{sR2}:{sR2+3}], s{so} offen offset:{s*64}")
    c("ctx per row (global load, 4*(row>>2) + 16G)")
    e(f"v_lshlrev_b32 v{t0}, 2, v{t0}")
    e(f"global_load_dword v{vCT}, v{t0}, s[24:25]")
    e(f"global_load_dword v{vCT+1}, v{t0}, s[24:25] offset:16")
    c("K/V SRDs + lane constants")
    e(f"s_mov_b32 s{sKR}, s18")
    e(f"s_mov_b32 s{sKR+1}, s19")
    e(f"s_mov_b32 s{sVR}, s20")
    e(f"s_mov_b32 s{sVR+1}, s21")
    e(f"s_mov_b32 s{sC}, 0x{f2u(CSC):08x}")
    e(f"s_mov_b32 s{sPLO}, 0x05040100")
    e(f"s_mov_b32 s{sPHI}, 0x07060302")
    e(f"s_mov_b32 s{sPAT}, 0x000F000F")
    e(f"s_mov_b32 s{sPAT+1}, 0x000F000F")
    e(f"s_mul_i32 s{sLDSB}, s{sW}, {RS}")
    e(f"s_lshl_b32 s{sT}, s{sH}, 8")
    e(f"v_lshlrev_b32 v{vVO}, 13, v{vG}")
    e(f"v_lshl_add_u32 v{vVO}, v{vRow}, 4, v{vVO}")
    e(f"v_add_u32 v{vVO}, s{sT}, v{vVO}")
    e(f"v_add_u32 v{vVO+1}, 0x1000, v{vVO}")
    for i in range(4):
        e(f"v_add_u32 v{t0}, {4*i}, v{vG}")
        e(f"v_xor_b32 v{t1}, v{t0}, v{vRow}")
        e(f"v_lshlrev_b32 v{t1}, 4, v{t1}")
        e(f"v_lshl_add_u32 v{t1}, v{t0}, 11, v{t1}")
        e(f"v_add_u32 v{t1}, s{sT}, v{t1}")
        e(f"v_subrev_u32 v{vKD+i}, {i*1024}, v{t1}")
    for s in range(4):
        e(f"v_add_u32 v{t0}, {4*s}, v{vG}")
        e(f"v_xor_b32 v{t0}, v{t0}, v{vRow}")
        e(f"v_lshlrev_b32 v{t0}, 4, v{t0}")
        e(f"v_lshl_add_u32 v{t0}, v{vRow}, 8, v{t0}")
        e(f"v_add_u32 v{vKA+s}, s{sLDSB}, v{t0}")
    e(f"v_mov_b32 v{vNINF}, 0xff800000")
    e(f"v_mov_b32 v{vM}, 0xf149f2ca")
    e(f"v_mov_b32 v{vM+1}, 0xf149f2ca")
    e(f"v_mov_b32 v{vLS}, 0")
    e(f"v_mov_b32 v{vLS+1}, 0")
    for i in range(64):
        e(f"v_mov_b32 v{vO+i}, 0")
    c("nblk scalars")
    e("s_waitcnt lgkmcnt(0)")
    e(f"s_mov_b32 s{sSH}, 0")
    e(f"s_mov_b32 s{sT3}, 0")
    for b in range(8):
        r = sCTX + b
        e(f"s_cmp_lt_i32 s{r}, 1")
        e(f"s_cselect_b32 s{r}, 8192, s{r}")
        e(f"s_cselect_b32 s{sT3}, 1, s{sT3}")
        e(f"s_min_i32 s{r}, s{r}, 8192")
        e(f"s_add_u32 s{r}, s{r}, 15")
        e(f"s_lshr_b32 s{r}, s{r}, 4")
        e(f"s_max_u32 s{sSH}, s{sSH}, s{r}")
    c("table arrived?")
    e("s_waitcnt vmcnt(10)")
    stamp(0) if False else None
    e(f"v_add_u32 v{vX}, {TAB}, v{vX}")
    for b in range(0, 8, 2):
        e(f"ds_write2st64_b32 v{vX}, v{vTB+b}, v{vTB+b+1} offset0:{b*8} offset1:{(b+1)*8}")
    for b in range(1, 8):
        e(f"v_xor_b32 v{vTB+8+b}, v{vTB}, v{vTB+b}")
    e(f"v_or3_b32 v{vTB+9}, v{vTB+9}, v{vTB+10}, v{vTB+11}")
    e(f"v_or3_b32 v{vTB+12}, v{vTB+12}, v{vTB+13}, v{vTB+14}")
    e(f"v_or3_b32 v{vTB+9}, v{vTB+9}, v{vTB+12}, v{vTB+15}")
    e(f"v_cmp_ne_u32 vcc, 0, v{vTB+9}")
    e(f"s_lshl_b32 s{sT}, s{sW}, 6")
    e(f"s_nop 0")
    e(f"s_ff1_i32_b64 s{sP}, vcc")
    e(f"s_add_u32 s{sP}, s{sP}, s{sT}")
    e(f"s_cmp_eq_u64 vcc, 0")
    e(f"s_cselect_b32 s{sP}, 512, s{sP}")
    e(f"s_lshl_b32 s{sT}, s{sW}, 2")
    e(f"s_add_u32 s{sT}, s{sT}, {PSL}")
    e(f"v_mov_b32 v{vY}, s{sT}")
    e(f"v_mov_b32 v{vT}, s{sP}")
    e(f"ds_write_b32 v{vY}, v{vT}")
    e(f"v_mov_b32 v{vY}, {PSL}")
    e("s_waitcnt lgkmcnt(0)")
    e("s_barrier")
    e(f"ds_read_b128 v[{vKF}:{vKF+3}], v{vY}")
    e(f"ds_read_b128 v[{vKF+4}:{vKF+7}], v{vY} offset:16")
    e("s_waitcnt lgkmcnt(0)")
    e(f"v_min3_u32 v{vKF}, v{vKF}, v{vKF+1}, v{vKF+2}")
    e(f"v_min3_u32 v{vKF+3}, v{vKF+3}, v{vKF+4}, v{vKF+5}")
    e(f"v_min3_u32 v{vKF}, v{vKF}, v{vKF+6}, v{vKF+7}")
    e(f"v_min_u32 v{vKF}, v{vKF}, v{vKF+3}")
    e("s_nop 0")
    e(f"v_readfirstlane_b32 s{sP}, v{vKF}")
    c("plan")
    e(f"s_min_u32 s{sSH}, s{sSH}, s{sP}")
    e(f"s_mov_b32 s{sOFF}, s{sSH}")
    for b in range(8):
        e(f"s_sub_i32 s{sT}, s{sCTX+b}, s{sP}")
        e(f"s_max_i32 s{sT}, s{sT}, 0")
        e(f"s_add_u32 s{sOFF+b+1}, s{sOFF+b}, s{sT}")
        e(f"s_sub_i32 s{sCB+b}, s{sP}, s{sOFF+b}")
        if b: e(f"s_addk_i32 s{sCB+b}, {512*b}")
    sU = sOFF + 8
    e(f"s_add_u32 s{sL}, s{sU}, 31")
    e(f"s_lshr_b32 s{sL}, s{sL}, 5")
    e(f"s_mul_i32 s{sU0}, s{sS}, s{sL}")
    e(f"s_add_u32 s{sU1}, s{sU0}, s{sL}")
    e(f"s_min_u32 s{sU1}, s{sU1}, s{sU}")
    e(f"s_add_u32 s{sT}, s{sU0}, s{sW}")
    vU, vCc = vKF, vKF + 1
    e(f"v_lshlrev_b32 v{vU}, 3, v{vLANE}")
    e(f"v_add_u32 v{vU}, s{sT}, v{vU}")
    e(f"v_mov_b32 v{vCc}, 0")
    for b in range(8):
        e(f"v_cmpx_le_u32 vcc, s{sOFF+b}, v{vU}")
        e(f"v_mov_b32 v{vCc}, s{sCB+b}")
    e("s_mov_b64 exec, -1")
    e(f"v_add_u32 v{vCc}, v{vU}, v{vCc}")
    e(f"v_and_b32 v{vCc}, 4095, v{vCc}")
    e(f"v_lshlrev_b32 v{vX}, 2, v{vCc}")
    e(f"ds_read_b32 v{vY}, v{vX} offset:{TAB}") if TAB < 65536 else (e(f"v_add_u32 v{vX}, {TAB}, v{vX}"), e(f"ds_read_b32 v{vY}, v{vX}"))
    e(f"v_and_b32 v{vINFO}, 511, v{vCc}")
    e(f"v_lshlrev_b32 v{vINFO}, 4, v{vINFO}")
    e(f"v_lshrrev_b32 v{vT}, 9, v{vCc}")
    e(f"v_cmp_gt_u32 vcc, s{sSH}, v{vU}")
    e(f"v_mov_b32 v{vT2}, 8")
    e(f"v_cmp_gt_u32 s[{sT2}:{sT2+1}], s{sU1}, v{vU}")
    e(f"v_cndmask_b32 v{vT}, v{vT}, v{vT2}, vcc")
    e(f"v_lshl_or_b32 v{vINFO}, v{vT}, 16, v{vINFO}")
    e(f"v_mov_b32 v{vT2}, 0x80000000")
    e(f"s_bcnt1_i32_b64 s{sN}, s[{sT2}:{sT2+1}]")
    e("s_waitcnt lgkmcnt(0)")
    e(f"v_lshlrev_b32 v{vY}, 15, v{vY}")
    e(f"v_cndmask_b32 v{vUOFF}, v{vT2}, v{vY}, s[{sT2}:{sT2+1}]")
    e("s_nop 0")

    def issue(d, soff):
        for i in range(4):
            e(f"buffer_load_dwordx4 v[{vVS+d*16+i*4}:{vVS+d*16+i*4+3}], v{vVO+(i>>1)}, s[{sVR}:{sVR+3}], s{soff} offen offset:{(i&1)*2048} {ldpol}")
    def issueK(d, soff):
        for i in range(4):
            e(f"buffer_load_dwordx4 v{vKD+i}, s[{sKR}:{sKR+3}], s{soff} offen offset:{i*1024} {kpol} lds")

    for d in range(D):
        e(f"v_readlane_b32 s{sC0+d}, v{vUOFF}, {d}")
    e("s_nop 1")
    for d in range(D):
        e(f"s_add_u32 m0, s{sLDSB}, {d*4096}")
        e("s_nop 0")
        issueK(d, sC0 + d)
        issue(d, sC0 + d)
    stamp(0)
    dstamp(2, True)
    dstamp(3)
    c("off critical path: ctx rows, zero-Q rare path, CM mask")
    e(f"s_waitcnt vmcnt({8*D})")
    e(f"v_lshrrev_b32 v{vT}, 4, v{vLANE}")
    e(f"v_lshlrev_b32 v{vT}, 2, v{vT}")
    e(f"v_mov_b32 v{vT2}, 8192")
    for G in range(2):
        e(f"v_cmp_gt_i32 s[{sC0+2*G}:{sC0+2*G+1}], 1, v{vCT+G}")
        e(f"v_min_i32 v{vCT+G}, v{vT2}, v{vCT+G}")
        e("s_nop 0")
        e(f"v_cndmask_b32 v{vCT+G}, v{vCT+G}, v{vT2}, s[{sC0+2*G}:{sC0+2*G+1}]")
        e(f"v_sub_u32 v{vCT+G}, v{vCT+G}, v{vT}")
    e(f"s_cmp_eq_u32 s{sT3}, 0")
    e("s_cbranch_scc1 L_noz")
    for G in range(2):
        for i in range(16):
            e(f"v_cndmask_b32 v{vQ+G*16+i}, v{vQ+G*16+i}, 0, s[{sC0+2*G}:{sC0+2*G+1}]")
    lab("L_noz")
    e(f"s_mov_b32 s{sLO}, s{sOFF}")
    e(f"s_mov_b32 s{sHI}, s{sOFF+1}")
    for b in range(1, 8):
        e(f"s_cmp_eq_u32 s{sW}, {b}")
        e(f"s_cselect_b32 s{sLO}, s{sOFF+b}, s{sLO}")
        e(f"s_cselect_b32 s{sHI}, s{sOFF+b+1}, s{sHI}")
    vA, vE = vKF, vKF + 1
    e(f"v_mul_lo_u32 v{vA}, v{vLANE}, s{sL}")
    e(f"v_add_u32 v{vE}, s{sL}, v{vA}")
    e(f"v_min_u32 v{vE}, s{sU}, v{vE}")
    e(f"v_cmp_lt_u32 s[{sC0}:{sC0+1}], v{vA}, v{vE}")
    e(f"v_cmp_gt_u32 s[{sC0+2}:{sC0+3}], s{sSH}, v{vA}")
    e(f"v_cmp_gt_u32 s[{sC0+4}:{sC0+5}], s{sHI}, v{vA}")
    e(f"v_cmp_lt_u32 s[{sC0+6}:{sC0+7}], s{sLO}, v{vE}")
    e(f"s_and_b32 s{sC0+4}, s{sC0+4}, s{sC0+6}")
    e(f"s_cmp_lt_u32 s{sLO}, s{sHI}")
    e(f"s_cselect_b32 s{sC0+4}, s{sC0+4}, 0")
    e(f"s_or_b32 s{sC0+2}, s{sC0+2}, s{sC0+4}")
    e(f"s_and_b32 s{sCM}, s{sC0+2}, s{sC0}")
    e(f"s_bcnt1_i32_b32 s{sEXP}, s{sCM}")
    for G, sg in ((0, sG0), (1, sG1)):
        e(f"s_max_u32 s{sT}, s{sU0}, s{sOFF+4*G}")
        e(f"s_min_u32 s{sT3}, s{sU1}, s{sOFF+4*G+4}")
        e(f"s_cmp_lt_u32 s{sT}, s{sT3}")
        e(f"s_cselect_b32 s{sg}, 1, 0")
        e(f"s_cmp_lt_u32 s{sU0}, s{sSH}")
        e(f"s_cselect_b32 s{sg}, 1, s{sg}")
    e(f"s_mov_b32 s{sK}, 0")
    e(f"s_mov_b32 s{sKD}, {D}")
    e(f"s_cmp_eq_u32 s{sN}, 0")
    e("s_cbranch_scc1 L_loopdone")

    def group(G, tag):
        q = vQ + G * 16; O = vO + G * 32; m = vM + G; ls = vLS + G
        for s in range(4):
            cc = "0" if s == 0 else f"v[{vS}:{vS+3}]"
            e(f"v_mfma_f32_16x16x32_bf16 v[{vS}:{vS+3}], v[{vKF+4*s}:{vKF+4*s+3}], v[{q+4*s}:{q+4*s+3}], {cc}")
        e(f"v_subrev_u32 v{vREL}, s{sT0}, v{vCT+G}")
        e(f"v_cndmask_b32 v{vREL}, 0, v{vREL}, s[{sMASK}:{sMASK+1}]")
        for i in range(4):
            e(f"v_cmp_lt_i32 s[{sC0+2*i}:{sC0+2*i+1}], {i}, v{vREL}")
        e("s_nop 1")
        for i in range(4):
            e(f"v_cndmask_b32 v{vS+i}, v{vNINF}, v{vS+i}, s[{sC0+2*i}:{sC0+2*i+1}]")
        e(f"v_max3_f32 v{vT}, v{vS}, v{vS+1}, v{vS+2}")
        e(f"v_max3_f32 v{vT}, v{vT}, v{vS+3}, v{m}")
        e(f"v_mov_b32 v{vT2}, v{vT}")
        e("s_nop 1")
        e(f"v_permlane32_swap_b32 v{vT}, v{vT2}")
        e(f"v_max_f32 v{vT}, v{vT}, v{vT2}")
        e(f"v_mov_b32 v{vT2}, v{vT}")
        e("s_nop 1")
        e(f"v_permlane16_swap_b32 v{vT}, v{vT2}")
        e(f"v_max_f32 v{vMN}, v{vT}, v{vT2}")
        e(f"v_sub_f32 v{vT}, v{m}, v{vMN}")
        e(f"v_mul_f32 v{vMC}, s{sC}, v{vMN}")
        e(f"v_mul_f32 v{vT}, s{sC}, v{vT}")
        e(f"v_exp_f32 v{vAL}, v{vT}")
        for i in range(4):
            e(f"v_fma_f32 v{vS+i}, v{vS+i}, s{sC}, -v{vMC}")
        for i in range(4):
            e(f"v_exp_f32 v{vS+i}, v{vS+i}")
        e(f"v_mov_b32 v{m}, v{vMN}")
        for i in range(16):
            e(f"v_pk_mul_f32 v[{O+2*i}:{O+2*i+1}], v[{O+2*i}:{O+2*i+1}], v[{vAL}:{vAL+1}] op_sel_hi:[1,0]")
        e(f"v_cvt_pk_bf16_f32 v{vP}, v{vS}, v{vS+1}")
        e(f"v_cvt_pk_bf16_f32 v{vP+1}, v{vS+2}, v{vS+3}")
        e(f"v_fma_f32 v{ls}, v{ls}, v{vAL}, v{vS}")
        e(f"v_add_f32 v{vT}, v{vS+1}, v{vS+2}")
        e(f"v_add_f32 v{ls}, v{ls}, v{vS+3}")
        e(f"v_add_f32 v{ls}, v{ls}, v{vT}")
        for ee in range(8):
            e(f"v_mfma_f32_16x16x16_bf16 v[{O+4*ee}:{O+4*ee+3}], v[{vVT+2*ee}:{vVT+2*ee+1}], v[{vP}:{vP+1}], v[{O+4*ee}:{O+4*ee+3}]")

    lab("L_loop")
    for d in range(D):
        c(f"---- stage {d}")
        e(f"v_readlane_b32 s{sOFFN}, v{vUOFF}, s{sKD}")
        e(f"v_readlane_b32 s{sINFO}, v{vINFO}, s{sK}")
        e(f"s_add_u32 m0, s{sLDSB}, {d*4096}")
        e(f"s_waitcnt vmcnt({8*D-8})")
        for s in range(4):
            e(f"ds_read_b128 v[{vKF+4*s}:{vKF+4*s+3}], v{vKA+s} offset:{d*4096}")
        vs = vVS + d * 16
        for q in range(4):
            for hl in range(2):
                sel = sPLO if hl == 0 else sPHI
                ee = 2 * q + hl
                e(f"v_perm_b32 v{vVT+2*ee}, v{vs+4+q}, v{vs+q}, s{sel}")
                e(f"v_perm_b32 v{vVT+2*ee+1}, v{vs+12+q}, v{vs+8+q}, s{sel}")
        issue(d, sOFFN)
        e(f"s_and_b32 s{sT0}, s{sINFO}, 0xffff")
        e(f"s_lshr_b32 s{sSEG}, s{sINFO}, 16")
        e(f"s_and_b32 s{sT}, s{sSEG}, 3")
        e(f"s_lshl_b32 s{sT}, s{sT}, 2")
        e(f"s_lshl_b64 s[{sMASK}:{sMASK+1}], s[{sPAT}:{sPAT+1}], s{sT}")
        e(f"s_cmp_eq_u32 s{sSEG}, 8")
        e(f"s_cselect_b64 s[{sMASK}:{sMASK+1}], -1, s[{sMASK}:{sMASK+1}]")
        e("s_waitcnt lgkmcnt(0)")
        issueK(d, sOFFN)
        if compute:
            e(f"s_bitcmp1_b32 s{sSEG}, 2")
            e(f"s_cbranch_scc1 L_g1_{d}")
            group(0, d)
            e(f"s_cmp_lt_u32 s{sSEG}, 4")
            e(f"s_cbranch_scc1 L_next_{d}")
            lab(f"L_g1_{d}")
            group(1, d)
            lab(f"L_next_{d}")
        e(f"s_add_u32 s{sK}, s{sK}, 1")
        e(f"s_add_u32 s{sKD}, s{sKD}, 1")
        e(f"s_cmp_ge_u32 s{sK}, s{sN}")
        if d < D - 1:
            e("s_cbranch_scc1 L_loopdone")
        else:
            e("s_cbranch_scc0 L_loop")
    lab("L_loopdone")
    stamp(1)
    dstamp(4, True)
    dstamp(5)
    if not epilogue:
        e("s_branch L_end")
    c("reduce l across g, write m/l and O to LDS")
    for G in range(2):
        ls = vLS + G
        e(f"v_mov_b32 v{vT2}, v{ls}")
        e("s_nop 1")
        e(f"v_permlane32_swap_b32 v{ls}, v{vT2}")
        e(f"v_add_f32 v{ls}, v{ls}, v{vT2}")
        e(f"v_mov_b32 v{vT2}, v{ls}")
        e("s_nop 1")
        e(f"v_permlane16_swap_b32 v{ls}, v{vT2}")
        e(f"v_add_f32 v{ls}, v{ls}, v{vT2}")
    e(f"v_and_b32 v{vX}, 15, v{vLANE}")
    e(f"s_lshl_b32 s{sT}, s{sW}, 8")
    e(f"s_add_u32 s{sT}, s{sT}, {ML}")
    e(f"v_lshlrev_b32 v{vY}, 3, v{vX}")
    e(f"v_add_u32 v{vY}, s{sT}, v{vY}")
    e(f"v_mov_b32 v{vS}, v{vM}")
    e(f"v_mov_b32 v{vS+1}, v{vLS}")
    e(f"v_mov_b32 v{vS+2}, v{vM+1}")
    e(f"v_mov_b32 v{vS+3}, v{vLS+1}")
    e(f"ds_write_b64 v{vY}, v[{vS}:{vS+1}]")
    e(f"ds_write_b64 v{vY}, v[{vS+2}:{vS+3}] offset:128")
    e(f"v_mul_u32_u24 v{vY}, 528, v{vX}")
    e(f"v_lshrrev_b32 v{vT}, 4, v{vLANE}")
    e(f"v_lshl_add_u32 v{vY}, v{vT}, 7, v{vY}")
    e(f"v_add_u32 v{vY}, s{sLDSB}, v{vY}")
    e("s_waitcnt vmcnt(0)")
    e("s_nop 7")
    for G, sg in ((0, sG0), (1, sG1)):
        e(f"s_cmp_eq_u32 s{sg}, 0")
        e(f"s_cbranch_scc1 L_skipw{G}")
        for ee in range(8):
            e(f"ds_write_b128 v{vY}, v[{vO+G*32+4*ee}:{vO+G*32+4*ee+3}] offset:{G*16*528+ee*16}")
        lab(f"L_skipw{G}")
    e("s_waitcnt lgkmcnt(0)")
    e("s_barrier")
    c("wave w combines batch w if touched")
    e(f"s_lshr_b32 s{sT}, s{sCM}, s{sS}")
    e(f"s_bitcmp1_b32 s{sT}, 0")
    e("s_cbranch_scc0 L_end")
    vR = vT
    e(f"v_lshrrev_b32 v{vR}, 4, v{vLANE}")
    e(f"s_lshl_b32 s{sT}, s{sW}, 2")
    e(f"v_add_u32 v{vR}, s{sT}, v{vR}")
    e(f"v_lshlrev_b32 v{vY}, 3, v{vR}")
    e(f"v_add_u32 v{vY}, {ML}, v{vY}")
    e(f"v_mul_u32_u24 v{vT2}, 528, v{vR}")
    e(f"v_lshl_add_u32 v{vT2}, v{vX}, 5, v{vT2}")
    e(f"v_add_u32 v{vMC}, {4*RS}, v{vT2}")
    vML = vKF
    vOO = vO
    for ws in range(8):
        e(f"ds_read_b64 v[{vML+2*ws}:{vML+2*ws+1}], v{vY} offset:{ws*256}")
    for ws in range(8):
        va = vT2 if ws < 4 else vMC
        off = (ws & 3) * RS
        e(f"ds_read_b128 v[{vOO+8*ws}:{vOO+8*ws+3}], v{va} offset:{off}")
        e(f"ds_read_b128 v[{vOO+8*ws+4}:{vOO+8*ws+7}], v{va} offset:{off+16}")
        if ws == 2: e("s_waitcnt lgkmcnt(6)")
    vMM = vMN
    e(f"v_max3_f32 v{vMM}, v{vML}, v{vML+2}, v{vML+4}")
    e(f"v_max3_f32 v{vMM}, v{vMM}, v{vML+6}, v{vML+8}")
    e(f"v_max3_f32 v{vMM}, v{vMM}, v{vML+10}, v{vML+12}")
    e(f"v_max_f32 v{vMM}, v{vMM}, v{vML+14}")
    for ws in range(8):
        e(f"v_sub_f32 v{vML+2*ws}, v{vML+2*ws}, v{vMM}")
        e(f"v_mul_f32 v{vML+2*ws}, s{sC}, v{vML+2*ws}")
        e(f"v_exp_f32 v{vML+2*ws}, v{vML+2*ws}")
    vACC = vVT
    e(f"v_mul_f32 v{vACC+9}, v{vML}, v{vML+1}")
    for ws in range(1, 8):
        e(f"v_fmac_f32 v{vACC+9}, v{vML+2*ws}, v{vML+2*ws+1}")
    e(f"v_mov_b32 v{vACC+8}, v{vMM}")
    e("s_waitcnt lgkmcnt(0)")
    for i in range(8):
        e(f"v_mul_f32 v{vACC+i}, v{vML}, v{vOO+i}")
    for ws in range(1, 8):
        for i in range(8):
            e(f"v_fmac_f32 v{vACC+i}, v{vML+2*ws}, v{vOO+8*ws+i}")
    c("single contributor? skip hand-off")
    e(f"s_mov_b32 s{sR1}, s30")
    e(f"s_mov_b32 s{sR1+1}, s31")
    e(f"s_mov_b32 s{sR1+2}, {8<<20}")
    e(f"s_lshl_b32 s{sT}, s{sH}, 8")
    e(f"s_add_u32 s{sT}, s{sT}, s{sW}")
    e(f"s_lshl_b32 s{sLO}, s{sT}, 12")
    e(f"v_lshlrev_b32 v{vX}, 4, v{vLANE}")
    e(f"v_lshlrev_b32 v{vY}, 3, v{vLANE}")
    e(f"s_cmp_eq_u32 s{sEXP}, 1")
    e("s_cbranch_scc1 L_final")
    e(f"s_lshl_b32 s{sT}, s{sS}, 15")
    e(f"s_add_u32 s{sT}, s{sT}, s{sLO}")
    e(f"buffer_store_dwordx4 v[{vACC}:{vACC+3}], v{vX}, s[{sR1}:{sR1+3}], s{sT} offen sc0 sc1")
    e(f"buffer_store_dwordx4 v[{vACC+4}:{vACC+7}], v{vX}, s[{sR1}:{sR1+3}], s{sT} offen offset:1024 sc0 sc1")
    e(f"buffer_store_dwordx2 v[{vACC+8}:{vACC+9}], v{vY}, s[{sR1}:{sR1+3}], s{sT} offen offset:2048 sc0 sc1")
    e(f"s_lshl_b32 s{sT}, s{sH}, 3")
    e(f"s_add_u32 s{sT}, s{sT}, s{sW}")
    if dbgt:
        e(f"s_and_b32 s{sT3}, s{sT}, 1")
        e(f"s_lshl_b32 s{sT3}, s{sT3}, 4")
        e(f"s_lshr_b32 s{sT}, s{sT}, 1")
        e(f"s_add_u32 s{sT}, s{sT}, 32")
    e(f"s_lshl_b32 s{sT}, s{sT}, 2")
    e(f"v_mov_b32 v{vT}, s{sT}")
    e(f"v_mov_b32 v{vT2}, 1")
    if dbgt: e(f"v_lshlrev_b32 v{vT2}, s{sT3}, v{vT2}")
    e(f"s_mov_b64 exec, 1")
    e("s_waitcnt vmcnt(0)")
    stamp(2)
    e(f"global_atomic_add v{vT2}, v{vT}, v{vT2}, s[28:29] sc0 sc1")
    e("s_waitcnt vmcnt(0)")
    e(f"v_readfirstlane_b32 s{sT}, v{vT2}")
    e(f"s_mov_b64 exec, -1")
    if dbgt:
        e(f"s_lshr_b32 s{sT}, s{sT}, s{sT3}")
        e(f"s_and_b32 s{sT}, s{sT}, 0xffff")
    stamp(3)
    e(f"s_add_u32 s{sT}, s{sT}, 1")
    e(f"s_cmp_eq_u32 s{sT}, s{sEXP}")
    e("s_cbranch_scc0 L_end")
    c("last arriver: gather other partials")
    e(f"s_bitset0_b32 s{sCM}, s{sS}")
    NB = 10
    vG0 = vO
    lab("L_gather")
    for i in range(NB):
        e(f"s_ff1_i32_b32 s{sT}, s{sCM}")
        e(f"s_bitset0_b32 s{sCM}, s{sT}")
        e(f"s_lshl_b32 s{sT3}, s{sT}, 15")
        e(f"s_add_u32 s{sT3}, s{sT3}, s{sLO}")
        e(f"s_cmp_lt_i32 s{sT}, 0")
        e(f"s_cselect_b32 s{sT3}, 0x40000000, s{sT3}")
        b0 = vG0 + i * 10
        e(f"buffer_load_dwordx2 v[{b0+8}:{b0+9}], v{vY}, s[{sR1}:{sR1+3}], s{sT3} offen offset:2048 sc0 sc1")
        e(f"buffer_load_dwordx4 v[{b0}:{b0+3}], v{vX}, s[{sR1}:{sR1+3}], s{sT3} offen sc0 sc1")
        e(f"buffer_load_dwordx4 v[{b0+4}:{b0+7}], v{vX}, s[{sR1}:{sR1+3}], s{sT3} offen offset:1024 sc0 sc1")
    e(f"v_mov_b32 v{vT2}, 0xf149f2ca")
    e("s_waitcnt vmcnt(0)")
    e(f"v_mov_b32 v{vMM}, v{vACC+8}")
    for i in range(NB):
        b0 = vG0 + i * 10
        e(f"v_cmp_lt_f32 vcc, 0, v{b0+9}")
        e("s_nop 1")
        e(f"v_cndmask_b32 v{b0+8}, v{vT2}, v{b0+8}, vcc")
        e(f"v_max_f32 v{vMM}, v{vMM}, v{b0+8}")
    e(f"v_sub_f32 v{vT}, v{vACC+8}, v{vMM}")
    e(f"v_mul_f32 v{vT}, s{sC}, v{vT}")
    e(f"v_exp_f32 v{vT}, v{vT}")
    e(f"v_mov_b32 v{vACC+8}, v{vMM}")
    for i in list(range(8)) + [9]:
        e(f"v_mul_f32 v{vACC+i}, v{vT}, v{vACC+i}")
    for i in range(NB):
        b0 = vG0 + i * 10
        e(f"v_sub_f32 v{vT}, v{b0+8}, v{vMM}")
        e(f"v_mul_f32 v{vT}, s{sC}, v{vT}")
        e(f"v_exp_f32 v{vT}, v{vT}")
        e("s_nop 0")
        for j in list(range(8)) + [9]:
            e(f"v_fmac_f32 v{vACC+j}, v{vT}, v{b0+j}")
    e(f"s_cmp_lg_u32 s{sCM}, 0")
    e("s_cbranch_scc1 L_gather")
    lab("L_final")
    e(f"v_rcp_f32 v{vT}, v{vACC+9}")
    e(f"s_mov_b32 s{sR2}, s26")
    e(f"s_mov_b32 s{sR2+1}, s27")
    e(f"v_lshrrev_b32 v{vY}, 4, v{vLANE}")
    e(f"v_lshlrev_b32 v{vY}, 8, v{vY}")
    e(f"v_bfe_u32 v{vX}, v{vLANE}, 2, 2")
    e(f"v_lshl_add_u32 v{vY}, v{vX}, 6, v{vY}")
    e(f"v_and_b32 v{vX}, 3, v{vLANE}")
    e(f"v_lshl_add_u32 v{vY}, v{vX}, 2, v{vY}")
    e(f"s_lshl_b32 s{sT}, s{sW}, 13")
    e(f"s_lshl_b32 s{sT3}, s{sH}, 10")
    e(f"s_add_u32 s{sT}, s{sT}, s{sT3}")
    for i in range(8):
        e(f"v_mul_f32 v{vACC+i}, v{vT}, v{vACC+i}")
    for r in range(4):
        e(f"v_cvt_pk_bf16_f32 v{vACC+r}, v{vACC+r}, v{vACC+4+r}")
    for r in range(4):
        e(f"buffer_store_dword v{vACC+r}, v{vY}, s[{sR2}:{sR2+3}], s{sT} offen offset:{16*r}")
    stamp(4)
    e("s_waitcnt vmcnt(0)") if dbgt else None
    dstamp(6, True)
    dstamp(7)
    lab("L_end")
    e("s_endpgm")
    o.append('.section .rodata,"a"')
    o.append(".p2align 6")
    o.append(f".amdhsa_kernel {NAME}_kernel")
    o.append(f"  .amdhsa_next_free_vgpr {NV}")
    o.append("  .amdhsa_next_free_sgpr 102")
    o.append(f"  .amdhsa_accum_offset {(NV+3)//4*4}")
    o.append("  .amdhsa_group_segment_fixed_size 0")
    o.append("  .amdhsa_kernarg_size 64")
    o.append("  .amdhsa_user_sgpr_count 2")
    o.append("  .amdhsa_user_sgpr_kernarg_segment_ptr 1")
    o.append("  .amdhsa_system_sgpr_workgroup_id_x 1")
    o.append(".end_amdhsa_kernel")
    return "\n".join(o) + "\n"

if __name__ == "__main__":
    kw = {}
    out = sys.argv[1]
    for a in sys.argv[2:]:
        k, v = a.split("=")
        kw[k] = v if k in ("ldpol","kpol") else int(v)
    open(out, "w").write(gen(**kw))
```

```python
import sys, math
NAME = "standalone__paged_block_table_kv_radixattention__decode"

def gen(D=4, HM=0, stamps=False, compute=True, ldpol="nt", epilogue=True, kpol=None, dbgt=0, spin=0):
    o = []
    if kpol is None: kpol = ldpol
    def e(s): o.append("    " + s)
    def lab(s): o.append(s + ":")
    def c(s): o.append("    ; " + s)

    RS = 16896
    ML = 8 * RS
    TAB = ML + 2048
    PSL = TAB + 16384
    LDS = PSL + 64
    KVB = 75497472
    CSC = math.log2(math.e) / math.sqrt(128.0)
    import struct
    def f2u(f): return struct.unpack("<I", struct.pack("<f", f))[0]

    sW, sH, sS = 3, 4, 5
    sK, sKD, sN = 6, 7, 8
    sP, sSH, sL, sU0, sU1 = 9, 10, 11, 12, 13
    sC = 14
    sLDSB = 15
    sCTX = 32
    sKR, sVR, sR1, sR2 = 40, 44, 48, 52
    sOFF = 56
    sCB = 65
    sT0, sSEG, sINFO, sOFFN = 73, 74, 75, 76
    sPLO, sPHI = 77, 78
    sT = 79
    sMASK = 80
    sPAT = 82
    sC0 = 84
    sCM, sEXP, sLO, sHI = 92, 93, 94, 95
    sT2 = 96
    sG0, sG1 = 98, 99
    sT3 = 100
    sST = 101
    vLANE = 1
    vKD = 2
    vVO = 6
    vKA = 8
    vUOFF, vINFO = 12, 13
    vCT = 14
    vNINF = 16
    vM = 17
    vLS = 19
    vT, vAL, vT2 = 21, 22, 24
    vMC, vREL, vMN = 25, 26, 27
    vP = 28
    vX, vY = 30, 31
    vS = 32
    vKF = 36
    vVT = 52
    vQ = 68
    vO = 100
    vVS = 164
    NV = vVS + 16 * D
    vSX, vSY = NV, NV + 1
    if stamps or dbgt: NV += 2

    def dstamp(word, neg=False):
        if not dbgt: return
        if word < 6:
            e(f"s_and_b32 s{sT2}, s2, 15")
            e(f"s_or_b32 s{sT2}, s{sT2}, s{sW}")
            e(f"s_cmp_lg_u32 s{sT2}, 0")
            e(f"s_cbranch_scc1 L_ds{word}")
        e(f"s_memrealtime s[{sT2}:{sT2+1}]")
        e(f"s_waitcnt lgkmcnt(0)")
        if neg: e(f"s_sub_u32 s{sT2}, 0, s{sT2}")
        e(f"s_mov_b64 s[{sC0}:{sC0+1}], exec")
        e(f"s_mov_b64 exec, 1")
        e(f"v_mov_b32 v{vSX}, s{sT2}")
        e(f"v_mov_b32 v{vSY}, {word*4}")
        e(f"global_atomic_umax v{vSY}, v{vSX}, s[28:29] sc1")
        e(f"s_mov_b64 exec, s[{sC0}:{sC0+1}]")
        lab(f"L_ds{word}")
    def stamp(idx):
        if not stamps: return
        e(f"s_memrealtime s[{sT2}:{sT2+1}]")
        e(f"s_waitcnt lgkmcnt(0)")
        e(f"v_writelane_b32 v{vSX}, s{sT2}, {idx}")
    def stampflush():
        if not stamps: return
        e(f"s_mov_b64 exec, 0xffff")
        e(f"v_lshlrev_b32 v{vSY}, 2, v{vLANE}")
        e(f"v_add_u32 v{vSY}, s{sST}, v{vSY}")
        e(f"global_store_dword v{vSY}, v{vSX}, s[30:31]")

    hdr = open(f"cdna_kernels/{NAME}.s.ref").read().split("\n")
    for ln in hdr:
        if ln.startswith("; @launch"): break
        o.append(ln)
    o.append(f"; @launch grid=(256,1,1) block=(512,1,1) lds={LDS}")
    o.append('.amdgcn_target "amdgcn-amd-amdhsa--gfx950"')
    o.append(".text")
    o.append(f".globl {NAME}_kernel")
    o.append(".p2align 8")
    o.append(f".type {NAME}_kernel,@function")
    lab(f"{NAME}_kernel")
    e("s_cmp_ge_u32 s2, 256")
    e("s_cbranch_scc1 L_end2")
    if stamps: e(f"v_mov_b32 v{vSX}, 0")
    stamp(0)
    if spin:
        e(f"s_memrealtime s[{sT2}:{sT2+1}]")
        e(f"s_waitcnt lgkmcnt(0)")
        e(f"s_mov_b32 s{sST}, s{sT2}")
    e("s_load_dwordx16 s[16:31], s[0:1], 0")
    e(f"v_and_b32 v{vLANE}, 63, v0")
    e(f"v_lshrrev_b32 v{vT}, 6, v0")
    e(f"v_lshlrev_b32 v{vX}, 2, v0")
    e(f"v_readfirstlane_b32 s{sW}, v{vT}")
    if HM == 0:
        e(f"s_and_b32 s{sH}, s2, 7")
        e(f"s_lshr_b32 s{sS}, s2, 3")
    else:
        e(f"s_lshr_b32 s{sH}, s2, 3")
        e(f"s_and_b32 s{sH}, s{sH}, 7")
        e(f"s_and_b32 s{sS}, s2, 7")
        e(f"s_lshr_b32 s{sT}, s2, 6")
        e(f"s_lshl_b32 s{sT}, s{sT}, 3")
        e(f"s_add_u32 s{sS}, s{sS}, s{sT}")
    e(f"v_add_u32 v{vY}, 0x1000, v{vX}")
    e(f"v_add_u32 v{vT}, 0x2000, v{vX}")
    e(f"v_add_u32 v{vT2}, 0x3000, v{vX}")
    e(f"s_mov_b32 s{sR1+2}, 16384")
    e(f"s_mov_b32 s{sR1+3}, 0x00020000")
    e(f"s_mov_b32 s{sR2+2}, 65536")
    e(f"s_mov_b32 s{sR2+3}, 0x00020000")
    e(f"s_mov_b32 s{sKR+2}, {KVB}")
    e(f"s_mov_b32 s{sKR+3}, 0x00020000")
    e(f"s_mov_b32 s{sVR+2}, {KVB}")
    e(f"s_mov_b32 s{sVR+3}, 0x00020000")
    e("s_waitcnt lgkmcnt(0)")
    stamp(1)
    dstamp(0, True)
    dstamp(1)
    c("block table loads -> v[36:43]")
    e(f"s_mov_b32 s{sR1}, s22")
    e(f"s_mov_b32 s{sR1+1}, s23")
    e(f"s_load_dwordx8 s[{sCTX}:{sCTX+7}], s[24:25], 0")
    vTB = vKF
    for b in range(8):
        va = [vX, vY, vT, vT2][b >> 1]
        e(f"buffer_load_dword v{vTB+b}, v{va}, s[{sR1}:{sR1+3}], 0 offen offset:{(b&1)*2048}")
    if stamps:
        e(f"s_lshl_b32 s{sST}, s2, 3")
        e(f"s_add_u32 s{sST}, s{sST}, s{sW}")
        e(f"s_lshl_b32 s{sST}, s{sST}, 6")
        e(f"s_add_u32 s{sST}, s{sST}, {301989888 - (1<<20)}")
    c("Q loads")
    e(f"s_mov_b32 s{sR2}, s16")
    e(f"s_mov_b32 s{sR2+1}, s17")
    vRow, vG = vVT, vVT + 1
    t0, t1, t2 = vVT + 2, vVT + 3, vVT + 4
    e(f"v_and_b32 v{vRow}, 15, v{vLANE}")
    e(f"v_lshrrev_b32 v{vG}, 4, v{vLANE}")
    e(f"v_lshrrev_b32 v{t0}, 2, v{vRow}")
    e(f"v_and_b32 v{t1}, 3, v{vRow}")
    e(f"v_lshlrev_b32 v{t2}, 13, v{t0}")
    e(f"v_lshl_add_u32 v{t2}, v{t1}, 8, v{t2}")
    e(f"v_lshl_add_u32 v{t2}, v{vG}, 4, v{t2}")
    e(f"s_lshl_b32 s{sT}, s{sH}, 10")
    e(f"s_add_u32 s{sT3}, s{sT}, 32768")
    for G in range(2):
        for s in range(4):
            so = sT if G == 0 else sT3
            e(f"buffer_load_dwordx4 v[{vQ+G*16+s*4}:{vQ+G*16+s*4+3}], v{t2}, s[{sR2}:{sR2+3}], s{so} offen offset:{s*64}")
    c("ctx per row (global load, 4*(row>>2) + 16G)")
    e(f"v_lshlrev_b32 v{t0}, 2, v{t0}")
    e(f"global_load_dword v{vCT}, v{t0}, s[24:25]")
    e(f"global_load_dword v{vCT+1}, v{t0}, s[24:25] offset:16")
    c("K/V SRDs + lane constants")
    e(f"s_mov_b32 s{sKR}, s18")
    e(f"s_mov_b32 s{sKR+1}, s19")
    e(f"s_mov_b32 s{sVR}, s20")
    e(f"s_mov_b32 s{sVR+1}, s21")
    e(f"s_mov_b32 s{sC}, 0x{f2u(CSC):08x}")
    e(f"s_mov_b32 s{sPLO}, 0x05040100")
    e(f"s_mov_b32 s{sPHI}, 0x07060302")
    e(f"s_mov_b32 s{sPAT}, 0x000F000F")
    e(f"s_mov_b32 s{sPAT+1}, 0x000F000F")
    e(f"s_mul_i32 s{sLDSB}, s{sW}, {RS}")
    e(f"s_lshl_b32 s{sT}, s{sH}, 8")
    e(f"v_lshlrev_b32 v{vVO}, 13, v{vG}")
    e(f"v_lshl_add_u32 v{vVO}, v{vRow}, 4, v{vVO}")
    e(f"v_add_u32 v{vVO}, s{sT}, v{vVO}")
    e(f"v_add_u32 v{vVO+1}, 0x1000, v{vVO}")
    for i in range(4):
        e(f"v_add_u32 v{t0}, {4*i}, v{vG}")
        e(f"v_xor_b32 v{t1}, v{t0}, v{vRow}")
        e(f"v_lshlrev_b32 v{t1}, 4, v{t1}")
        e(f"v_lshl_add_u32 v{t1}, v{t0}, 11, v{t1}")
        e(f"v_add_u32 v{t1}, s{sT}, v{t1}")
        e(f"v_subrev_u32 v{vKD+i}, {i*1024}, v{t1}")
    for s in range(4):
        e(f"v_add_u32 v{t0}, {4*s}, v{vG}")
        e(f"v_xor_b32 v{t0}, v{t0}, v{vRow}")
        e(f"v_lshlrev_b32 v{t0}, 4, v{t0}")
        e(f"v_lshl_add_u32 v{t0}, v{vRow}, 8, v{t0}")
        e(f"v_add_u32 v{vKA+s}, s{sLDSB}, v{t0}")
    e(f"v_mov_b32 v{vNINF}, 0xff800000")
    e(f"v_mov_b32 v{vM}, 0xf149f2ca")
    e(f"v_mov_b32 v{vM+1}, 0xf149f2ca")
    e(f"v_mov_b32 v{vLS}, 0")
    e(f"v_mov_b32 v{vLS+1}, 0")
    for i in range(64):
        e(f"v_mov_b32 v{vO+i}, 0")
    c("nblk scalars")
    e("s_waitcnt lgkmcnt(0)")
    e(f"s_mov_b32 s{sSH}, 0")
    e(f"s_mov_b32 s{sT3}, 0")
    for b in range(8):
        r = sCTX + b
        e(f"s_cmp_lt_i32 s{r}, 1")
        e(f"s_cselect_b32 s{r}, 8192, s{r}")
        e(f"s_cselect_b32 s{sT3}, 1, s{sT3}")
        e(f"s_min_i32 s{r}, s{r}, 8192")
        e(f"s_add_u32 s{r}, s{r}, 15")
        e(f"s_lshr_b32 s{r}, s{r}, 4")
        e(f"s_max_u32 s{sSH}, s{sSH}, s{r}")
    c("table arrived?")
    e("s_waitcnt vmcnt(10)")
    stamp(2)
    e(f"v_add_u32 v{vX}, {TAB}, v{vX}")
    for b in range(0, 8, 2):
        e(f"ds_write2st64_b32 v{vX}, v{vTB+b}, v{vTB+b+1} offset0:{b*8} offset1:{(b+1)*8}")
    for b in range(1, 8):
        e(f"v_xor_b32 v{vTB+8+b}, v{vTB}, v{vTB+b}")
    e(f"v_or3_b32 v{vTB+9}, v{vTB+9}, v{vTB+10}, v{vTB+11}")
    e(f"v_or3_b32 v{vTB+12}, v{vTB+12}, v{vTB+13}, v{vTB+14}")
    e(f"v_or3_b32 v{vTB+9}, v{vTB+9}, v{vTB+12}, v{vTB+15}")
    e(f"v_cmp_ne_u32 vcc, 0, v{vTB+9}")
    e(f"s_lshl_b32 s{sT}, s{sW}, 6")
    e(f"s_nop 0")
    e(f"s_ff1_i32_b64 s{sP}, vcc")
    e(f"s_add_u32 s{sP}, s{sP}, s{sT}")
    e(f"s_cmp_eq_u64 vcc, 0")
    e(f"s_cselect_b32 s{sP}, 512, s{sP}")
    e(f"s_lshl_b32 s{sT}, s{sW}, 2")
    e(f"s_add_u32 s{sT}, s{sT}, {PSL}")
    e(f"v_mov_b32 v{vY}, s{sT}")
    e(f"v_mov_b32 v{vT}, s{sP}")
    e(f"ds_write_b32 v{vY}, v{vT}")
    e(f"v_mov_b32 v{vY}, {PSL}")
    e("s_waitcnt lgkmcnt(0)")
    e("s_barrier")
    stamp(3)
    e(f"ds_read_b128 v[{vKF}:{vKF+3}], v{vY}")
    e(f"ds_read_b128 v[{vKF+4}:{vKF+7}], v{vY} offset:16")
    e("s_waitcnt lgkmcnt(0)")
    e(f"v_min3_u32 v{vKF}, v{vKF}, v{vKF+1}, v{vKF+2}")
    e(f"v_min3_u32 v{vKF+3}, v{vKF+3}, v{vKF+4}, v{vKF+5}")
    e(f"v_min3_u32 v{vKF}, v{vKF}, v{vKF+6}, v{vKF+7}")
    e(f"v_min_u32 v{vKF}, v{vKF}, v{vKF+3}")
    e("s_nop 0")
    e(f"v_readfirstlane_b32 s{sP}, v{vKF}")
    c("plan")
    e(f"s_min_u32 s{sSH}, s{sSH}, s{sP}")
    e(f"s_mov_b32 s{sOFF}, s{sSH}")
    for b in range(8):
        e(f"s_sub_i32 s{sT}, s{sCTX+b}, s{sP}")
        e(f"s_max_i32 s{sT}, s{sT}, 0")
        e(f"s_add_u32 s{sOFF+b+1}, s{sOFF+b}, s{sT}")
        e(f"s_sub_i32 s{sCB+b}, s{sP}, s{sOFF+b}")
        if b: e(f"s_addk_i32 s{sCB+b}, {512*b}")
    sU = sOFF + 8
    e(f"s_add_u32 s{sL}, s{sU}, 31")
    e(f"s_lshr_b32 s{sL}, s{sL}, 5")
    e(f"s_mul_i32 s{sU0}, s{sS}, s{sL}")
    e(f"s_add_u32 s{sU1}, s{sU0}, s{sL}")
    e(f"s_min_u32 s{sU1}, s{sU1}, s{sU}")
    e(f"s_add_u32 s{sT}, s{sU0}, s{sW}")
    vU, vCc = vKF, vKF + 1
    e(f"v_lshlrev_b32 v{vU}, 3, v{vLANE}")
    e(f"v_add_u32 v{vU}, s{sT}, v{vU}")
    e(f"v_mov_b32 v{vCc}, 0")
    for b in range(8):
        e(f"v_cmpx_le_u32 vcc, s{sOFF+b}, v{vU}")
        e(f"v_mov_b32 v{vCc}, s{sCB+b}")
    e("s_mov_b64 exec, -1")
    e(f"v_add_u32 v{vCc}, v{vU}, v{vCc}")
    e(f"v_and_b32 v{vCc}, 4095, v{vCc}")
    e(f"v_lshlrev_b32 v{vX}, 2, v{vCc}")
    e(f"ds_read_b32 v{vY}, v{vX} offset:{TAB}") if TAB < 65536 else (e(f"v_add_u32 v{vX}, {TAB}, v{vX}"), e(f"ds_read_b32 v{vY}, v{vX}"))
    e(f"v_and_b32 v{vINFO}, 511, v{vCc}")
    e(f"v_lshlrev_b32 v{vINFO}, 4, v{vINFO}")
    e(f"v_lshrrev_b32 v{vT}, 9, v{vCc}")
    e(f"v_cmp_gt_u32 vcc, s{sSH}, v{vU}")
    e(f"v_mov_b32 v{vT2}, 8")
    e(f"v_cmp_gt_u32 s[{sT2}:{sT2+1}], s{sU1}, v{vU}")
    e(f"v_cndmask_b32 v{vT}, v{vT}, v{vT2}, vcc")
    e(f"v_lshl_or_b32 v{vINFO}, v{vT}, 16, v{vINFO}")
    e(f"v_mov_b32 v{vT2}, 0x80000000")
    e(f"s_bcnt1_i32_b64 s{sN}, s[{sT2}:{sT2+1}]")
    e("s_waitcnt lgkmcnt(0)")
    e(f"v_lshlrev_b32 v{vY}, 15, v{vY}")
    e(f"v_cndmask_b32 v{vUOFF}, v{vT2}, v{vY}, s[{sT2}:{sT2+1}]")
    e("s_nop 0")

    def issue(d, soff):
        for i in range(4):
            e(f"buffer_load_dwordx4 v[{vVS+d*16+i*4}:{vVS+d*16+i*4+3}], v{vVO+(i>>1)}, s[{sVR}:{sVR+3}], s{soff} offen offset:{(i&1)*2048} {ldpol}")
    def issueK(d, soff):
        for i in range(4):
            e(f"buffer_load_dwordx4 v{vKD+i}, s[{sKR}:{sKR+3}], s{soff} offen offset:{i*1024} {kpol} lds")

    for d in range(D):
        e(f"v_readlane_b32 s{sC0+d}, v{vUOFF}, {d}")
    e("s_nop 1")
    for d in range(D):
        e(f"s_add_u32 m0, s{sLDSB}, {d*4096}")
        e("s_nop 0")
        issueK(d, sC0 + d)
        issue(d, sC0 + d)
    stamp(4)
    dstamp(2, True)
    dstamp(3)
    c("off critical path: ctx rows, zero-Q rare path, CM mask")
    e(f"s_waitcnt vmcnt({8*D})")
    e(f"v_lshrrev_b32 v{vT}, 4, v{vLANE}")
    e(f"v_lshlrev_b32 v{vT}, 2, v{vT}")
    e(f"v_mov_b32 v{vT2}, 8192")
    for G in range(2):
        e(f"v_cmp_gt_i32 s[{sC0+2*G}:{sC0+2*G+1}], 1, v{vCT+G}")
        e(f"v_min_i32 v{vCT+G}, v{vT2}, v{vCT+G}")
        e("s_nop 0")
        e(f"v_cndmask_b32 v{vCT+G}, v{vCT+G}, v{vT2}, s[{sC0+2*G}:{sC0+2*G+1}]")
        e(f"v_sub_u32 v{vCT+G}, v{vCT+G}, v{vT}")
    e(f"s_cmp_eq_u32 s{sT3}, 0")
    e("s_cbranch_scc1 L_noz")
    for G in range(2):
        for i in range(16):
            e(f"v_cndmask_b32 v{vQ+G*16+i}, v{vQ+G*16+i}, 0, s[{sC0+2*G}:{sC0+2*G+1}]")
    lab("L_noz")
    e(f"s_mov_b32 s{sLO}, s{sOFF}")
    e(f"s_mov_b32 s{sHI}, s{sOFF+1}")
    for b in range(1, 8):
        e(f"s_cmp_eq_u32 s{sW}, {b}")
        e(f"s_cselect_b32 s{sLO}, s{sOFF+b}, s{sLO}")
        e(f"s_cselect_b32 s{sHI}, s{sOFF+b+1}, s{sHI}")
    vA, vE = vKF, vKF + 1
    e(f"v_mul_lo_u32 v{vA}, v{vLANE}, s{sL}")
    e(f"v_add_u32 v{vE}, s{sL}, v{vA}")
    e(f"v_min_u32 v{vE}, s{sU}, v{vE}")
    e(f"v_cmp_lt_u32 s[{sC0}:{sC0+1}], v{vA}, v{vE}")
    e(f"v_cmp_gt_u32 s[{sC0+2}:{sC0+3}], s{sSH}, v{vA}")
    e(f"v_cmp_gt_u32 s[{sC0+4}:{sC0+5}], s{sHI}, v{vA}")
    e(f"v_cmp_lt_u32 s[{sC0+6}:{sC0+7}], s{sLO}, v{vE}")
    e(f"s_and_b32 s{sC0+4}, s{sC0+4}, s{sC0+6}")
    e(f"s_cmp_lt_u32 s{sLO}, s{sHI}")
    e(f"s_cselect_b32 s{sC0+4}, s{sC0+4}, 0")
    e(f"s_or_b32 s{sC0+2}, s{sC0+2}, s{sC0+4}")
    e(f"s_and_b32 s{sCM}, s{sC0+2}, s{sC0}")
    e(f"s_bcnt1_i32_b32 s{sEXP}, s{sCM}")
    for G, sg in ((0, sG0), (1, sG1)):
        e(f"s_max_u32 s{sT}, s{sU0}, s{sOFF+4*G}")
        e(f"s_min_u32 s{sT3}, s{sU1}, s{sOFF+4*G+4}")
        e(f"s_cmp_lt_u32 s{sT}, s{sT3}")
        e(f"s_cselect_b32 s{sg}, 1, 0")
        e(f"s_cmp_lt_u32 s{sU0}, s{sSH}")
        e(f"s_cselect_b32 s{sg}, 1, s{sg}")
    e(f"s_mov_b32 s{sK}, 0")
    e(f"s_mov_b32 s{sKD}, {D}")
    e(f"s_cmp_eq_u32 s{sN}, 0")
    stamp(5)
    e(f"s_cmp_eq_u32 s{sN}, 0")
    e("s_cbranch_scc1 L_loopdone")

    def group(G, tag):
        q = vQ + G * 16; O = vO + G * 32; m = vM + G; ls = vLS + G
        for s in range(4):
            cc = "0" if s == 0 else f"v[{vS}:{vS+3}]"
            e(f"v_mfma_f32_16x16x32_bf16 v[{vS}:{vS+3}], v[{vKF+4*s}:{vKF+4*s+3}], v[{q+4*s}:{q+4*s+3}], {cc}")
        e(f"v_subrev_u32 v{vREL}, s{sT0}, v{vCT+G}")
        e(f"v_cndmask_b32 v{vREL}, 0, v{vREL}, s[{sMASK}:{sMASK+1}]")
        for i in range(4):
            e(f"v_cmp_lt_i32 s[{sC0+2*i}:{sC0+2*i+1}], {i}, v{vREL}")
        e("s_nop 1")
        for i in range(4):
            e(f"v_cndmask_b32 v{vS+i}, v{vNINF}, v{vS+i}, s[{sC0+2*i}:{sC0+2*i+1}]")
        e(f"v_max3_f32 v{vT}, v{vS}, v{vS+1}, v{vS+2}")
        e(f"v_max3_f32 v{vT}, v{vT}, v{vS+3}, v{m}")
        e(f"v_mov_b32 v{vT2}, v{vT}")
        e("s_nop 1")
        e(f"v_permlane32_swap_b32 v{vT}, v{vT2}")
        e(f"v_max_f32 v{vT}, v{vT}, v{vT2}")
        e(f"v_mov_b32 v{vT2}, v{vT}")
        e("s_nop 1")
        e(f"v_permlane16_swap_b32 v{vT}, v{vT2}")
        e(f"v_max_f32 v{vMN}, v{vT}, v{vT2}")
        e(f"v_sub_f32 v{vT}, v{m}, v{vMN}")
        e(f"v_mul_f32 v{vMC}, s{sC}, v{vMN}")
        e(f"v_mul_f32 v{vT}, s{sC}, v{vT}")
        e(f"v_exp_f32 v{vAL}, v{vT}")
        for i in range(4):
            e(f"v_fma_f32 v{vS+i}, v{vS+i}, s{sC}, -v{vMC}")
        for i in range(4):
            e(f"v_exp_f32 v{vS+i}, v{vS+i}")
        e(f"v_mov_b32 v{m}, v{vMN}")
        for i in range(16):
            e(f"v_pk_mul_f32 v[{O+2*i}:{O+2*i+1}], v[{O+2*i}:{O+2*i+1}], v[{vAL}:{vAL+1}] op_sel_hi:[1,0]")
        e(f"v_cvt_pk_bf16_f32 v{vP}, v{vS}, v{vS+1}")
        e(f"v_cvt_pk_bf16_f32 v{vP+1}, v{vS+2}, v{vS+3}")
        e(f"v_fma_f32 v{ls}, v{ls}, v{vAL}, v{vS}")
        e(f"v_add_f32 v{vT}, v{vS+1}, v{vS+2}")
        e(f"v_add_f32 v{ls}, v{ls}, v{vS+3}")
        e(f"v_add_f32 v{ls}, v{ls}, v{vT}")
        for ee in range(8):
            e(f"v_mfma_f32_16x16x16_bf16 v[{O+4*ee}:{O+4*ee+3}], v[{vVT+2*ee}:{vVT+2*ee+1}], v[{vP}:{vP+1}], v[{O+4*ee}:{O+4*ee+3}]")

    lab("L_loop")
    for d in range(D):
        c(f"---- stage {d}")
        e(f"v_readlane_b32 s{sOFFN}, v{vUOFF}, s{sKD}")
        e(f"v_readlane_b32 s{sINFO}, v{vINFO}, s{sK}")
        e(f"s_add_u32 m0, s{sLDSB}, {d*4096}")
        e(f"s_waitcnt vmcnt({8*D-8})")
        if d == 0 and stamps:
            e(f"s_cmp_lg_u32 s{sK}, 0")
            e(f"s_cbranch_scc1 L_nost")
            stamp(6)
            lab("L_nost")
        for s in range(4):
            e(f"ds_read_b128 v[{vKF+4*s}:{vKF+4*s+3}], v{vKA+s} offset:{d*4096}")
        vs = vVS + d * 16
        for q in range(4):
            for hl in range(2):
                sel = sPLO if hl == 0 else sPHI
                ee = 2 * q + hl
                e(f"v_perm_b32 v{vVT+2*ee}, v{vs+4+q}, v{vs+q}, s{sel}")
                e(f"v_perm_b32 v{vVT+2*ee+1}, v{vs+12+q}, v{vs+8+q}, s{sel}")
        issue(d, sOFFN)
        e(f"s_and_b32 s{sT0}, s{sINFO}, 0xffff")
        e(f"s_lshr_b32 s{sSEG}, s{sINFO}, 16")
        e(f"s_and_b32 s{sT}, s{sSEG}, 3")
        e(f"s_lshl_b32 s{sT}, s{sT}, 2")
        e(f"s_lshl_b64 s[{sMASK}:{sMASK+1}], s[{sPAT}:{sPAT+1}], s{sT}")
        e(f"s_cmp_eq_u32 s{sSEG}, 8")
        e(f"s_cselect_b64 s[{sMASK}:{sMASK+1}], -1, s[{sMASK}:{sMASK+1}]")
        e("s_waitcnt lgkmcnt(0)")
        issueK(d, sOFFN)
        if compute:
            e(f"s_bitcmp1_b32 s{sSEG}, 2")
            e(f"s_cbranch_scc1 L_g1_{d}")
            group(0, d)
            e(f"s_cmp_lt_u32 s{sSEG}, 4")
            e(f"s_cbranch_scc1 L_next_{d}")
            lab(f"L_g1_{d}")
            group(1, d)
            lab(f"L_next_{d}")
        e(f"s_add_u32 s{sK}, s{sK}, 1")
        e(f"s_add_u32 s{sKD}, s{sKD}, 1")
        e(f"s_cmp_ge_u32 s{sK}, s{sN}")
        if d < D - 1:
            e("s_cbranch_scc1 L_loopdone")
        else:
            e("s_cbranch_scc0 L_loop")
    lab("L_loopdone")
    stamp(7)
    dstamp(4, True)
    dstamp(5)
    if not epilogue:
        e("s_branch L_end")
    c("reduce l across g, write m/l and O to LDS")
    for G in range(2):
        ls = vLS + G
        e(f"v_mov_b32 v{vT2}, v{ls}")
        e("s_nop 1")
        e(f"v_permlane32_swap_b32 v{ls}, v{vT2}")
        e(f"v_add_f32 v{ls}, v{ls}, v{vT2}")
        e(f"v_mov_b32 v{vT2}, v{ls}")
        e("s_nop 1")
        e(f"v_permlane16_swap_b32 v{ls}, v{vT2}")
        e(f"v_add_f32 v{ls}, v{ls}, v{vT2}")
    e(f"v_and_b32 v{vX}, 15, v{vLANE}")
    e(f"s_lshl_b32 s{sT}, s{sW}, 8")
    e(f"s_add_u32 s{sT}, s{sT}, {ML}")
    e(f"v_lshlrev_b32 v{vY}, 3, v{vX}")
    e(f"v_add_u32 v{vY}, s{sT}, v{vY}")
    e(f"v_mov_b32 v{vS}, v{vM}")
    e(f"v_mov_b32 v{vS+1}, v{vLS}")
    e(f"v_mov_b32 v{vS+2}, v{vM+1}")
    e(f"v_mov_b32 v{vS+3}, v{vLS+1}")
    e(f"ds_write_b64 v{vY}, v[{vS}:{vS+1}]")
    e(f"ds_write_b64 v{vY}, v[{vS+2}:{vS+3}] offset:128")
    e(f"v_mul_u32_u24 v{vY}, 528, v{vX}")
    e(f"v_lshrrev_b32 v{vT}, 4, v{vLANE}")
    e(f"v_lshl_add_u32 v{vY}, v{vT}, 7, v{vY}")
    e(f"v_add_u32 v{vY}, s{sLDSB}, v{vY}")
    e("s_waitcnt vmcnt(0)")
    e("s_nop 7")
    for G, sg in ((0, sG0), (1, sG1)):
        e(f"s_cmp_eq_u32 s{sg}, 0")
        e(f"s_cbranch_scc1 L_skipw{G}")
        for ee in range(8):
            e(f"ds_write_b128 v{vY}, v[{vO+G*32+4*ee}:{vO+G*32+4*ee+3}] offset:{G*16*528+ee*16}")
        lab(f"L_skipw{G}")
    e("s_waitcnt lgkmcnt(0)")
    e("s_barrier")
    stamp(8)
    c("wave w combines batch w if touched")
    e(f"s_lshr_b32 s{sT}, s{sCM}, s{sS}")
    e(f"s_bitcmp1_b32 s{sT}, 0")
    e("s_cbranch_scc0 L_end")
    vR = vT
    e(f"v_lshrrev_b32 v{vR}, 4, v{vLANE}")
    e(f"s_lshl_b32 s{sT}, s{sW}, 2")
    e(f"v_add_u32 v{vR}, s{sT}, v{vR}")
    e(f"v_lshlrev_b32 v{vY}, 3, v{vR}")
    e(f"v_add_u32 v{vY}, {ML}, v{vY}")
    e(f"v_mul_u32_u24 v{vT2}, 528, v{vR}")
    e(f"v_lshl_add_u32 v{vT2}, v{vX}, 5, v{vT2}")
    e(f"v_add_u32 v{vMC}, {4*RS}, v{vT2}")
    vML = vKF
    vOO = vO
    for ws in range(8):
        e(f"ds_read_b64 v[{vML+2*ws}:{vML+2*ws+1}], v{vY} offset:{ws*256}")
    for ws in range(8):
        va = vT2 if ws < 4 else vMC
        off = (ws & 3) * RS
        e(f"ds_read_b128 v[{vOO+8*ws}:{vOO+8*ws+3}], v{va} offset:{off}")
        e(f"ds_read_b128 v[{vOO+8*ws+4}:{vOO+8*ws+7}], v{va} offset:{off+16}")
        if ws == 2: e("s_waitcnt lgkmcnt(6)")
    vMM = vMN
    e(f"v_max3_f32 v{vMM}, v{vML}, v{vML+2}, v{vML+4}")
    e(f"v_max3_f32 v{vMM}, v{vMM}, v{vML+6}, v{vML+8}")
    e(f"v_max3_f32 v{vMM}, v{vMM}, v{vML+10}, v{vML+12}")
    e(f"v_max_f32 v{vMM}, v{vMM}, v{vML+14}")
    for ws in range(8):
        e(f"v_sub_f32 v{vML+2*ws}, v{vML+2*ws}, v{vMM}")
        e(f"v_mul_f32 v{vML+2*ws}, s{sC}, v{vML+2*ws}")
        e(f"v_exp_f32 v{vML+2*ws}, v{vML+2*ws}")
    vACC = vVT
    e(f"v_mul_f32 v{vACC+9}, v{vML}, v{vML+1}")
    for ws in range(1, 8):
        e(f"v_fmac_f32 v{vACC+9}, v{vML+2*ws}, v{vML+2*ws+1}")
    e(f"v_mov_b32 v{vACC+8}, v{vMM}")
    e("s_waitcnt lgkmcnt(0)")
    for i in range(8):
        e(f"v_mul_f32 v{vACC+i}, v{vML}, v{vOO+i}")
    for ws in range(1, 8):
        for i in range(8):
            e(f"v_fmac_f32 v{vACC+i}, v{vML+2*ws}, v{vOO+8*ws+i}")
    stamp(9)
    c("single contributor? skip hand-off")
    e(f"s_mov_b32 s{sR1}, s30")
    e(f"s_mov_b32 s{sR1+1}, s31")
    e(f"s_mov_b32 s{sR1+2}, {8<<20}")
    e(f"s_lshl_b32 s{sT}, s{sH}, 8")
    e(f"s_add_u32 s{sT}, s{sT}, s{sW}")
    e(f"s_lshl_b32 s{sLO}, s{sT}, 12")
    e(f"v_lshlrev_b32 v{vX}, 4, v{vLANE}")
    e(f"v_lshlrev_b32 v{vY}, 3, v{vLANE}")
    e(f"s_cmp_eq_u32 s{sEXP}, 1")
    e("s_cbranch_scc1 L_final")
    e(f"s_lshl_b32 s{sT}, s{sS}, 15")
    e(f"s_add_u32 s{sT}, s{sT}, s{sLO}")
    e(f"buffer_store_dwordx4 v[{vACC}:{vACC+3}], v{vX}, s[{sR1}:{sR1+3}], s{sT} offen sc0 sc1")
    e(f"buffer_store_dwordx4 v[{vACC+4}:{vACC+7}], v{vX}, s[{sR1}:{sR1+3}], s{sT} offen offset:1024 sc0 sc1")
    e(f"buffer_store_dwordx2 v[{vACC+8}:{vACC+9}], v{vY}, s[{sR1}:{sR1+3}], s{sT} offen offset:2048 sc0 sc1")
    e(f"s_lshl_b32 s{sT}, s{sH}, 3")
    e(f"s_add_u32 s{sT}, s{sT}, s{sW}")
    if dbgt:
        e(f"s_and_b32 s{sT3}, s{sT}, 1")
        e(f"s_lshl_b32 s{sT3}, s{sT3}, 4")
        e(f"s_lshr_b32 s{sT}, s{sT}, 1")
        e(f"s_add_u32 s{sT}, s{sT}, 32")
    e(f"s_lshl_b32 s{sT}, s{sT}, 2")
    e(f"v_mov_b32 v{vT}, s{sT}")
    e(f"v_mov_b32 v{vT2}, 1")
    if dbgt: e(f"v_lshlrev_b32 v{vT2}, s{sT3}, v{vT2}")
    e(f"s_mov_b64 exec, 1")
    e("s_waitcnt vmcnt(0)")
    stamp(10)
    e(f"global_atomic_add v{vT2}, v{vT}, v{vT2}, s[28:29] sc0 sc1")
    e("s_waitcnt vmcnt(0)")
    e(f"v_readfirstlane_b32 s{sT}, v{vT2}")
    e(f"s_mov_b64 exec, -1")
    if dbgt:
        e(f"s_lshr_b32 s{sT}, s{sT}, s{sT3}")
        e(f"s_and_b32 s{sT}, s{sT}, 0xffff")
    stamp(11)
    e(f"s_add_u32 s{sT}, s{sT}, 1")
    e(f"s_cmp_eq_u32 s{sT}, s{sEXP}")
    e("s_cbranch_scc0 L_end")
    c("last arriver: gather other partials")
    e(f"s_bitset0_b32 s{sCM}, s{sS}")
    NB = 10
    vG0 = vO
    lab("L_gather")
    for i in range(NB):
        e(f"s_ff1_i32_b32 s{sT}, s{sCM}")
        e(f"s_bitset0_b32 s{sCM}, s{sT}")
        e(f"s_lshl_b32 s{sT3}, s{sT}, 15")
        e(f"s_add_u32 s{sT3}, s{sT3}, s{sLO}")
        e(f"s_cmp_lt_i32 s{sT}, 0")
        e(f"s_cselect_b32 s{sT3}, 0x40000000, s{sT3}")
        b0 = vG0 + i * 10
        e(f"buffer_load_dwordx2 v[{b0+8}:{b0+9}], v{vY}, s[{sR1}:{sR1+3}], s{sT3} offen offset:2048 sc0 sc1")
        e(f"buffer_load_dwordx4 v[{b0}:{b0+3}], v{vX}, s[{sR1}:{sR1+3}], s{sT3} offen sc0 sc1")
        e(f"buffer_load_dwordx4 v[{b0+4}:{b0+7}], v{vX}, s[{sR1}:{sR1+3}], s{sT3} offen offset:1024 sc0 sc1")
    e(f"v_mov_b32 v{vT2}, 0xf149f2ca")
    e("s_waitcnt vmcnt(0)")
    stamp(12)
    e(f"v_mov_b32 v{vMM}, v{vACC+8}")
    for i in range(NB):
        b0 = vG0 + i * 10
        e(f"v_cmp_lt_f32 vcc, 0, v{b0+9}")
        e("s_nop 1")
        e(f"v_cndmask_b32 v{b0+8}, v{vT2}, v{b0+8}, vcc")
        e(f"v_max_f32 v{vMM}, v{vMM}, v{b0+8}")
    e(f"v_sub_f32 v{vT}, v{vACC+8}, v{vMM}")
    e(f"v_mul_f32 v{vT}, s{sC}, v{vT}")
    e(f"v_exp_f32 v{vT}, v{vT}")
    e(f"v_mov_b32 v{vACC+8}, v{vMM}")
    for i in list(range(8)) + [9]:
        e(f"v_mul_f32 v{vACC+i}, v{vT}, v{vACC+i}")
    for i in range(NB):
        b0 = vG0 + i * 10
        e(f"v_sub_f32 v{vT}, v{b0+8}, v{vMM}")
        e(f"v_mul_f32 v{vT}, s{sC}, v{vT}")
        e(f"v_exp_f32 v{vT}, v{vT}")
        e("s_nop 0")
        for j in list(range(8)) + [9]:
            e(f"v_fmac_f32 v{vACC+j}, v{vT}, v{b0+j}")
    e(f"s_cmp_lg_u32 s{sCM}, 0")
    e("s_cbranch_scc1 L_gather")
    lab("L_final")
    e(f"v_rcp_f32 v{vT}, v{vACC+9}")
    e(f"s_mov_b32 s{sR2}, s26")
    e(f"s_mov_b32 s{sR2+1}, s27")
    e(f"v_lshrrev_b32 v{vY}, 4, v{vLANE}")
    e(f"v_lshlrev_b32 v{vY}, 8, v{vY}")
    e(f"v_bfe_u32 v{vX}, v{vLANE}, 2, 2")
    e(f"v_lshl_add_u32 v{vY}, v{vX}, 6, v{vY}")
    e(f"v_and_b32 v{vX}, 3, v{vLANE}")
    e(f"v_lshl_add_u32 v{vY}, v{vX}, 2, v{vY}")
    e(f"s_lshl_b32 s{sT}, s{sW}, 13")
    e(f"s_lshl_b32 s{sT3}, s{sH}, 10")
    e(f"s_add_u32 s{sT}, s{sT}, s{sT3}")
    for i in range(8):
        e(f"v_mul_f32 v{vACC+i}, v{vT}, v{vACC+i}")
    for r in range(4):
        e(f"v_cvt_pk_bf16_f32 v{vACC+r}, v{vACC+r}, v{vACC+4+r}")
    for r in range(4):
        e(f"buffer_store_dword v{vACC+r}, v{vY}, s[{sR2}:{sR2+3}], s{sT} offen offset:{16*r}")
    stamp(13)
    e("s_waitcnt vmcnt(0)") if (dbgt or stamps) else None
    stamp(14)
    dstamp(6, True)
    dstamp(7)
    lab("L_end")
    stampflush()
    if spin:
        lab("L_spin")
        e(f"s_memrealtime s[{sT2}:{sT2+1}]")
        e(f"s_waitcnt lgkmcnt(0)")
        e(f"s_sub_u32 s{sT2}, s{sT2}, s{sST}")
        e(f"s_cmp_lt_u32 s{sT2}, {spin}")
        e(f"s_cbranch_scc1 L_spin")
    lab("L_end2")
    e("s_endpgm")
    o.append('.section .rodata,"a"')
    o.append(".p2align 6")
    o.append(f".amdhsa_kernel {NAME}_kernel")
    o.append(f"  .amdhsa_next_free_vgpr {NV}")
    o.append("  .amdhsa_next_free_sgpr 102")
    o.append(f"  .amdhsa_accum_offset {(NV+3)//4*4}")
    o.append("  .amdhsa_group_segment_fixed_size 0")
    o.append("  .amdhsa_kernarg_size 64")
    o.append("  .amdhsa_user_sgpr_count 2")
    o.append("  .amdhsa_user_sgpr_kernarg_segment_ptr 1")
    o.append("  .amdhsa_system_sgpr_workgroup_id_x 1")
    o.append(".end_amdhsa_kernel")
    return "\n".join(o) + "\n"

if __name__ == "__main__":
    kw = {}
    out = sys.argv[1]
    for a in sys.argv[2:]:
        k, v = a.split("=")
        kw[k] = v if k in ("ldpol","kpol") else int(v)
    open(out, "w").write(gen(**kw))
```

```python
import sys, math, struct
NAME = "standalone__paged_block_table_kv_radixattention__decode"
def f2u(f): return struct.unpack("<I", struct.pack("<f", f))[0]

def gen(D=3, stamps=0, compute=1, ldpol="nt", epilogue=1, NSPEC=2, PHI=0.89, NB=12, TD=0, X3=2, X7=2, HX=1, hs="sc0 sc1", hl="sc0 sc1"):
    o = []
    def e(s): o.append("    " + s)
    def lab(s): o.append(s + ":")
    def c(s): o.append("    ; " + s)

    RS = 16896
    ML = 8 * RS
    TAB = ML + 2048
    QB = TAB + 16384
    PSL = QB + 8192
    LDS = PSL + 64
    KVB = 75497472
    CSC = math.log2(math.e) / math.sqrt(128.0)

    ectx = [8192 - ((i + 1) * 2654435761) % 2048 for i in range(8)]
    eP = 256
    enb = [(x + 15) // 16 for x in ectx]
    eS = eP
    eoff = [eS]
    for b in range(8): eoff.append(eoff[-1] + enb[b] - eP)
    ePv = eoff[8] - eS
    eU = eoff[8]

    sW, sH, sS = 3, 4, 5
    sK, sKD, sN = 6, 7, 8
    sP, sSH, sNSL, sU0, sU1 = 9, 10, 11, 12, 13
    sC = 14
    sLDSB = 15
    sCTX = 32
    sKR, sVR, sR1, sR2 = 40, 44, 48, 52
    sOFF = 56
    sCB = 65
    sT0, sSEG, sINFO, sOFFN = 73, 74, 75, 76
    sPLO, sPHI = 77, 78
    sT = 79
    sMASK = 80
    sPAT = 82
    sC0 = 84
    sCM, sLO, sHI = 92, 94, 95
    sEXP = 17
    sT2 = 96
    sG0, sG1 = 98, 99
    sT3 = 100
    sST = 101
    sZQ = 16
    sSP = 22
    vLANE = 1
    vKD = 2; vVO = 6; vKA = 8
    vUOFF, vINFO = 12, 13
    vCT = 14; vNINF = 16; vM = 17; vLS = 19
    vT, vAL, vT2 = 21, 22, 24
    vMC, vREL, vMN = 25, 26, 27
    vP = 28; vX, vY = 30, 31
    vS = 32; vKF = 36; vVT = 52; vQ = 68; vO = 100; vVS = 164
    NV = max(vVS + 16 * D, vO + NB * 10 + 2)
    vSX, vSY = NV, NV + 1
    if stamps: NV += 2

    def stamp(idx):
        if not stamps: return
        e(f"s_memrealtime s[{sT2}:{sT2+1}]")
        e(f"s_waitcnt lgkmcnt(0)")
        e(f"v_writelane_b32 v{vSX}, s{sT2}, {idx}")
    def stampflush():
        if not stamps: return
        e(f"s_lshl_b32 s{sST}, s2, 3")
        e(f"s_add_u32 s{sST}, s{sST}, s{sW}")
        e(f"s_lshl_b32 s{sST}, s{sST}, 6")
        e(f"s_add_u32 s{sST}, s{sST}, {301989888 - (1<<20)}")
        e(f"s_mov_b64 exec, 0xffff")
        e(f"v_lshlrev_b32 v{vSY}, 2, v{vLANE}")
        e(f"v_add_u32 v{vSY}, s{sST}, v{vSY}")
        e(f"global_store_dword v{vSY}, v{vSX}, s[30:31]")

    def plan_slices(S, U, a):
        a0, a1, a2, a3, a4, a5, vA, vE = [a + i for i in range(8)]
        e(f"v_cvt_f32_u32 v{a0}, {U}")
        e(f"v_cvt_f32_u32 v{a1}, {S}")
        e(f"v_cvt_f32_u32 v{a2}, s{sNSL}")
        e(f"v_rcp_f32 v{a3}, v{a0}")
        e(f"v_mul_f32 v{a1}, 0x{f2u(1.0/PHI):08x}, v{a1}")
        e(f"v_mul_f32 v{a1}, v{a1}, v{a2}")
        e(f"v_mul_f32 v{a1}, v{a1}, v{a3}")
        e(f"v_ceil_f32 v{a1}, v{a1}")
        e(f"v_min_f32 v{a1}, v{a1}, v{a2}")
        e(f"v_mov_b32 v{a3}, 0x{f2u(PHI-1.0):08x}")
        e(f"v_fma_f32 v{a2}, v{a1}, v{a3}, v{a2}")
        e(f"v_rcp_f32 v{a2}, v{a2}")
        e(f"v_cvt_f32_u32 v{a4}, v{vLANE}")
        e(f"v_mul_f32 v{a2}, v{a2}, v{a0}")
        e(f"v_add_f32 v{a5}, 1.0, v{a4}")
        for x, d in ((a4, vA), (a5, vE)):
            e(f"v_min_f32 v{d}, v{x}, v{a1}")
            e(f"v_fma_f32 v{d}, v{d}, v{a3}, v{x}")
            e(f"v_fma_f32 v{d}, v{d}, v{a2}, 0.5")
            e(f"v_cvt_u32_f32 v{d}, v{d}")
        e(f"v_add_u32 v{a4}, 1, v{vLANE}")
        e(f"v_mov_b32 v{a0}, {U}")
        e(f"v_cmp_le_u32 vcc, s{sNSL}, v{a4}")
        e(f"v_min_u32 v{vA}, v{vA}, v{a0}")
        e(f"v_min_u32 v{vE}, v{vE}, v{a0}")
        e(f"v_cndmask_b32 v{vE}, v{vE}, v{a0}, vcc")
        e(f"v_cmp_le_u32 vcc, s{sNSL}, v{vLANE}")
        e("s_nop 1")
        e(f"v_cndmask_b32 v{vA}, v{vA}, v{a0}, vcc")

    def issueV(d, soff):
        for i in range(4):
            e(f"buffer_load_dwordx4 v[{vVS+d*16+i*4}:{vVS+d*16+i*4+3}], v{vVO+(i>>1)}, s[{sVR}:{sVR+3}], s{soff} offen offset:{(i&1)*2048} {ldpol}")
    def issueK(d, soff):
        for i in range(4):
            e(f"buffer_load_dwordx4 v{vKD+i}, s[{sKR}:{sKR+3}], s{soff} offen offset:{i*1024} {ldpol} lds")

    hdr = open(f"cdna_kernels/{NAME}.s.ref").read().split("\n")
    for ln in hdr:
        if ln.startswith("; @launch"): break
        o.append(ln)
    o.append(f"; @launch grid=(256,1,1) block=(512,1,1) lds={LDS}")
    o.append('.amdgcn_target "amdgcn-amd-amdhsa--gfx950"')
    o.append(".text")
    o.append(f".globl {NAME}_kernel")
    o.append(".p2align 8")
    o.append(f".type {NAME}_kernel,@function")
    lab(f"{NAME}_kernel")
    e("s_cmp_ge_u32 s2, 256")
    e("s_cbranch_scc1 L_end2")
    if stamps: e(f"v_mov_b32 v{vSX}, 0")
    stamp(0)
    e("s_load_dwordx16 s[16:31], s[0:1], 0")
    e(f"v_lshrrev_b32 v{vT}, 6, v0")
    e(f"v_and_b32 v{vLANE}, 63, v0")
    e(f"v_readfirstlane_b32 s{sW}, v{vT}")
    e(f"s_and_b32 s{sH}, s2, 7")
    if HX: e(f"s_xor_b32 s{sH}, s{sH}, {HX}")
    e(f"s_lshr_b32 s{sS}, s2, 3")
    e(f"s_mov_b32 s{sNSL}, 32")
    for hh, X in ((3, X3), (7, X7)):
        if not X: continue
        e(f"s_cmp_eq_u32 s{sH}, {hh}")
        e(f"s_cselect_b32 s{sNSL}, {32-X}, s{sNSL}")
    e(f"s_cmp_ge_u32 s{sS}, s{sNSL}")
    e(f"s_cbranch_scc0 L_map")
    e(f"s_sub_u32 s{sS}, s{sS}, s{sNSL}")
    e(f"s_add_u32 s{sS}, s{sS}, 32")
    e(f"s_sub_u32 s{sH}, s{sH}, 2")
    lab("L_map")
    for hh, X in ((1, X3), (5, X7)):
        if not X: continue
        e(f"s_cmp_eq_u32 s{sH}, {hh}")
        e(f"s_cselect_b32 s{sNSL}, {32+X}, s{sNSL}")
    vRow, vG = vVT, vVT + 1
    t0, t1, t2 = vVT + 2, vVT + 3, vVT + 4
    vQO = vVT + 5
    e(f"v_and_b32 v{vRow}, 15, v{vLANE}")
    e(f"v_lshrrev_b32 v{vG}, 4, v{vLANE}")
    e(f"v_lshlrev_b32 v{vX}, 2, v0")
    e(f"s_lshl_b32 s{sT}, s{sH}, 8")
    e(f"s_mul_i32 s{sLDSB}, s{sW}, {RS}")
    e(f"v_lshlrev_b32 v{vVO}, 13, v{vG}")
    e(f"v_lshl_add_u32 v{vVO}, v{vRow}, 4, v{vVO}")
    e(f"v_add_u32 v{vVO}, s{sT}, v{vVO}")
    e(f"v_add_u32 v{vVO+1}, 0x1000, v{vVO}")
    e(f"v_xor_b32 v{t0}, v{vG}, v{vRow}")
    e(f"v_lshlrev_b32 v{t1}, 11, v{vG}")
    e(f"v_add_u32 v{t1}, s{sT}, v{t1}")
    for i in range(4):
        if i: e(f"v_xor_b32 v{t2}, {4*i}, v{t0}")
        e(f"v_lshl_add_u32 v{vKD+i}, v{t2 if i else t0}, 4, v{t1}")
        if i: e(f"v_add_u32 v{vKD+i}, {i*8192-i*1024}, v{vKD+i}")
    e(f"v_add_u32 v{vY}, 0x1000, v{vX}")
    e(f"v_add_u32 v{vT}, 0x2000, v{vX}")
    e(f"v_add_u32 v{vT2}, 0x3000, v{vX}")
    e(f"s_and_b32 s{sT3}, s{sW}, 3")
    e(f"s_lshl_b32 s{sT3}, s{sT3}, 2")
    e(f"v_xor_b32 v{vQO}, s{sT3}, v{t0}")
    e(f"v_lshlrev_b32 v{vQO}, 4, v{vQO}")
    e(f"v_lshl_add_u32 v{vQO}, v{vG}, 8, v{vQO}")
    e(f"s_lshl_b32 s{sLO}, s{sW}, 13")
    e(f"s_lshl_b32 s{sT3}, s{sH}, 10")
    e(f"s_add_u32 s{sLO}, s{sLO}, s{sT3}")
    e(f"s_lshl_b32 s{sHI}, s{sW}, 10")
    e(f"s_add_u32 s{sHI}, s{sHI}, {QB}")
    for r, n in ((sR1, 16384), (sR2, 65536), (sKR, KVB), (sVR, KVB)):
        e(f"s_mov_b32 s{r+2}, {n}")
        e(f"s_mov_b32 s{r+3}, 0x00020000")
    if NSPEC:
        c("predicted first units (prefetch hint only)")
        plan_slices(str(eS), str(eU), vKF)
        e("s_nop 0")
        e(f"v_readlane_b32 s{sT}, v{vKF+6}, s{sS}")
        e(f"s_add_u32 s{sT}, s{sT}, s{sW}")
        for k in range(NSPEC):
            if k: e(f"s_add_u32 s{sT}, s{sT}, 8")
            e(f"s_mov_b32 s{sT3}, 0")
            for b in range(1, 8):
                e(f"s_cmp_ge_u32 s{sT}, {eoff[b]}")
                e(f"s_cselect_b32 s{sT3}, {eP + 256*b - eoff[b]}, s{sT3}")
            e(f"s_add_u32 s{sT3}, s{sT3}, s{sT}")
            e(f"s_lshl_b32 s{sC0+k}, s{sT3}, 15")
    e(f"s_mov_b32 m0, s{sHI}")
    e("s_waitcnt lgkmcnt(0)")
    stamp(1)
    e(f"s_mov_b32 s{sR1}, s22")
    e(f"s_mov_b32 s{sR1+1}, s23")
    e(f"s_load_dwordx8 s[{sCTX}:{sCTX+7}], s[24:25], 0")
    vTB = vKF
    for b in range(8):
        va = [vX, vY, vT, vT2][b >> 1]
        e(f"buffer_load_dword v{vTB+b}, v{va}, s[{sR1}:{sR1+3}], 0 offen offset:{(b&1)*2048}")
    e(f"s_mov_b32 s{sR2}, s16")
    e(f"s_mov_b32 s{sR2+1}, s17")
    e(f"s_mov_b32 s{sKR}, s18")
    e(f"s_mov_b32 s{sKR+1}, s19")
    e(f"buffer_load_dwordx4 v{vQO}, s[{sR2}:{sR2+3}], s{sLO} offen lds")
    e(f"s_mov_b32 s{sVR}, s20")
    e(f"s_mov_b32 s{sVR+1}, s21")
    for k in range(NSPEC):
        e(f"s_add_u32 m0, s{sLDSB}, {k*4096}")
        e("s_nop 0")
        issueK(k, sC0 + k)
        issueV(k, sC0 + k)
    c("constants")
    e(f"s_mov_b32 s{sC}, 0x{f2u(CSC):08x}")
    e(f"s_mov_b32 s{sPLO}, 0x05040100")
    e(f"s_mov_b32 s{sPHI}, 0x07060302")
    e(f"s_mov_b32 s{sPAT}, 0x000F000F")
    e(f"s_mov_b32 s{sPAT+1}, 0x000F000F")
    e(f"v_lshlrev_b32 v{t1}, 8, v{vRow}")
    e(f"v_add_u32 v{t1}, s{sLDSB}, v{t1}")
    for s in range(4):
        if s: e(f"v_xor_b32 v{t2}, {4*s}, v{t0}")
        e(f"v_lshl_add_u32 v{vKA+s}, v{t2 if s else t0}, 4, v{t1}")
    e(f"v_mov_b32 v{vNINF}, 0xff800000")
    e(f"v_mov_b32 v{vM}, 0xf149f2ca")
    e(f"v_mov_b32 v{vM+1}, 0xf149f2ca")
    e(f"v_mov_b32 v{vLS}, 0")
    e(f"v_mov_b32 v{vLS+1}, 0")
    for i in range(64):
        e(f"v_mov_b32 v{vO+i}, 0")
    e(f"v_add_u32 v{vX}, {TAB}, v{vX}")
    c("ctx scalars")
    e("s_waitcnt lgkmcnt(0)")
    e(f"s_mov_b32 s{sSH}, 0")
    e(f"s_mov_b32 s{sZQ}, 0")
    for b in range(8):
        r = sCTX + b
        e(f"s_cmp_lt_i32 s{r}, 1")
        e(f"s_cselect_b32 s{r}, 8192, s{r}")
        e(f"s_cselect_b32 s{sT}, {1<<b}, 0")
        e(f"s_or_b32 s{sZQ}, s{sZQ}, s{sT}")
        e(f"s_min_i32 s{r}, s{r}, 8192")
        e(f"s_add_u32 s{sCB+b}, s{r}, 15")
        e(f"s_lshr_b32 s{sCB+b}, s{sCB+b}, 4")
        e(f"s_max_u32 s{sSH}, s{sSH}, s{sCB+b}")
    for b in range(4):
        e(f"s_lshl_b64 exec, s[{sPAT}:{sPAT+1}], {4*b}")
        e(f"v_mov_b32 v{vCT}, s{sCTX+b}")
        e(f"v_mov_b32 v{vCT+1}, s{sCTX+4+b}")
    e("s_mov_b64 exec, -1")
    e(f"v_lshlrev_b32 v{t1}, 2, v{vG}")
    e(f"v_sub_u32 v{vCT}, v{vCT}, v{t1}")
    e(f"v_sub_u32 v{vCT+1}, v{vCT+1}, v{t1}")
    e(f"s_lshl_b32 s{sT}, s{sW}, 2")
    e(f"s_add_u32 s{sT}, s{sT}, {PSL}")
    e(f"v_mov_b32 v{vY}, s{sT}")
    e(f"s_lshl_b32 s{sT}, s{sW}, 6")
    c("table arrived?")
    e(f"s_waitcnt vmcnt({1+8*NSPEC})")
    stamp(2)
    for b in range(1, 8):
        e(f"v_xor_b32 v{vTB+8+b}, v{vTB}, v{vTB+b}")
    e(f"v_or3_b32 v{vTB+9}, v{vTB+9}, v{vTB+10}, v{vTB+11}")
    e(f"v_or3_b32 v{vTB+12}, v{vTB+12}, v{vTB+13}, v{vTB+14}")
    e(f"v_or3_b32 v{vTB+9}, v{vTB+9}, v{vTB+12}, v{vTB+15}")
    e(f"v_cmp_ne_u32 vcc, 0, v{vTB+9}")
    for b in range(0, 8, 2):
        e(f"ds_write2st64_b32 v{vX}, v{vTB+b}, v{vTB+b+1} offset0:{b*8} offset1:{(b+1)*8}")
    e(f"s_ff1_i32_b64 s{sP}, vcc")
    e(f"s_add_u32 s{sP}, s{sP}, s{sT}")
    e(f"s_cmp_eq_u64 vcc, 0")
    e(f"s_cselect_b32 s{sP}, 512, s{sP}")
    e(f"v_mov_b32 v{vT}, s{sP}")
    e(f"ds_write_b32 v{vY}, v{vT}")
    e(f"v_mov_b32 v{vY}, {PSL}")
    e(f"s_waitcnt vmcnt({8*NSPEC}) lgkmcnt(0)")
    e("s_barrier")
    stamp(3)
    e(f"ds_read_b128 v[{vKF}:{vKF+3}], v{vY}")
    e(f"ds_read_b128 v[{vKF+4}:{vKF+7}], v{vY} offset:16")
    c("Q fragments from LDS")
    e(f"s_sub_u32 s{sT}, {QB}, s{sLDSB}")
    for s in range(4):
        e(f"v_add_u32 v{vS+s}, s{sT}, v{vKA+s}")
    for G in range(2):
        for s in range(4):
            e(f"ds_read_b128 v[{vQ+G*16+4*s}:{vQ+G*16+4*s+3}], v{vS+s} offset:{G*4096}")
    e("s_waitcnt lgkmcnt(8)")
    e(f"v_min3_u32 v{vKF}, v{vKF}, v{vKF+1}, v{vKF+2}")
    e(f"v_min3_u32 v{vKF+3}, v{vKF+3}, v{vKF+4}, v{vKF+5}")
    e(f"v_min3_u32 v{vKF}, v{vKF}, v{vKF+6}, v{vKF+7}")
    e(f"v_min_u32 v{vKF}, v{vKF}, v{vKF+3}")
    e("s_nop 0")
    e(f"v_readfirstlane_b32 s{sP}, v{vKF}")
    c("plan")
    e(f"s_min_u32 s{sSH}, s{sSH}, s{sP}")
    e(f"s_mov_b32 s{sOFF}, s{sSH}")
    for b in range(8):
        e(f"s_sub_i32 s{sT}, s{sCB+b}, s{sP}")
        e(f"s_max_i32 s{sT}, s{sT}, 0")
        e(f"s_add_u32 s{sOFF+b+1}, s{sOFF+b}, s{sT}")
        e(f"s_sub_i32 s{sCB+b}, s{sP}, s{sOFF+b}")
        if b: e(f"s_addk_i32 s{sCB+b}, {512*b}")
    sU = sOFF + 8
    plan_slices(f"s{sSH}", f"s{sU}", vKF)
    vA, vE = vKF + 6, vKF + 7
    e("s_nop 0")
    e(f"v_readlane_b32 s{sU0}, v{vA}, s{sS}")
    e(f"v_readlane_b32 s{sU1}, v{vE}, s{sS}")
    vU, vCc = vKF, vKF + 1
    e(f"v_lshlrev_b32 v{vU}, 3, v{vLANE}")
    e(f"v_mov_b32 v{vCc}, 0")
    e(f"s_add_u32 s{sT}, s{sU0}, s{sW}")
    e(f"v_add_u32 v{vU}, s{sT}, v{vU}")
    for b in range(8):
        e(f"v_cmpx_le_u32 vcc, s{sOFF+b}, v{vU}")
        e(f"v_mov_b32 v{vCc}, s{sCB+b}")
    e("s_mov_b64 exec, -1")
    e(f"v_add_u32 v{vCc}, v{vU}, v{vCc}")
    e(f"v_and_b32 v{vCc}, 4095, v{vCc}")
    e(f"v_lshlrev_b32 v{vX}, 2, v{vCc}")
    e(f"v_add_u32 v{vX}, {TAB}, v{vX}")
    e(f"ds_read_b32 v{vY}, v{vX}")
    e(f"v_and_b32 v{vINFO}, 511, v{vCc}")
    e(f"v_lshlrev_b32 v{vINFO}, 4, v{vINFO}")
    e(f"v_lshrrev_b32 v{vT}, 9, v{vCc}")
    e(f"v_cmp_gt_u32 vcc, s{sSH}, v{vU}")
    e(f"v_mov_b32 v{vT2}, 8")
    e(f"v_cmp_gt_u32 s[{sT2}:{sT2+1}], s{sU1}, v{vU}")
    e(f"v_cndmask_b32 v{vT}, v{vT}, v{vT2}, vcc")
    e(f"v_lshl_or_b32 v{vINFO}, v{vT}, 16, v{vINFO}")
    e(f"v_mov_b32 v{vT2}, 0x80000000")
    e(f"s_bcnt1_i32_b64 s{sN}, s[{sT2}:{sT2+1}]")
    e("s_waitcnt lgkmcnt(0)")
    e(f"v_lshlrev_b32 v{vY}, 15, v{vY}")
    e(f"v_cndmask_b32 v{vUOFF}, v{vT2}, v{vY}, s[{sT2}:{sT2+1}]")
    e("s_nop 0")
    sRL = sC0 + 4
    for d in range(D):
        e(f"v_readlane_b32 s{sRL+d}, v{vUOFF}, {d}")
    if NSPEC:
        e("s_nop 0")
        for k in range(NSPEC):
            e(f"s_cmp_lg_u32 s{sRL+k}, s{sC0+k}")
            e("s_cbranch_scc1 L_mispec")
        lab("L_specok")
    else:
        e("s_nop 1")
    for d in range(NSPEC, D):
        e(f"s_add_u32 m0, s{sLDSB}, {d*4096}")
        e("s_nop 0")
        issueK(d, sRL + d)
        issueV(d, sRL + d)
    stamp(4)
    c("off critical path")
    e(f"s_cmp_eq_u32 s{sZQ}, 0")
    e("s_cbranch_scc0 L_zq")
    lab("L_noz")
    e(f"s_mov_b32 s{sLO}, s{sOFF}")
    e(f"s_mov_b32 s{sHI}, s{sOFF+1}")
    for b in range(1, 8):
        e(f"s_cmp_eq_u32 s{sW}, {b}")
        e(f"s_cselect_b32 s{sLO}, s{sOFF+b}, s{sLO}")
        e(f"s_cselect_b32 s{sHI}, s{sOFF+b+1}, s{sHI}")
    e(f"v_cmp_lt_u32 s[{sC0}:{sC0+1}], v{vA}, v{vE}")
    e(f"v_cmp_gt_u32 s[{sC0+2}:{sC0+3}], s{sSH}, v{vA}")
    e(f"v_cmp_gt_u32 s[{sC0+4}:{sC0+5}], s{sHI}, v{vA}")
    e(f"v_cmp_lt_u32 s[{sC0+6}:{sC0+7}], s{sLO}, v{vE}")
    e(f"s_and_b64 s[{sC0+4}:{sC0+5}], s[{sC0+4}:{sC0+5}], s[{sC0+6}:{sC0+7}]")
    e(f"s_cmp_lt_u32 s{sLO}, s{sHI}")
    e(f"s_cselect_b64 s[{sC0+4}:{sC0+5}], s[{sC0+4}:{sC0+5}], 0")
    e(f"s_or_b64 s[{sC0+2}:{sC0+3}], s[{sC0+2}:{sC0+3}], s[{sC0+4}:{sC0+5}]")
    e(f"s_and_b64 s[{sCM}:{sCM+1}], s[{sC0+2}:{sC0+3}], s[{sC0}:{sC0+1}]")
    e(f"s_bcnt1_i32_b64 s{sEXP}, s[{sCM}:{sCM+1}]")
    for G, sg in ((0, sG0), (1, sG1)):
        e(f"s_max_u32 s{sT}, s{sU0}, s{sOFF+4*G}")
        e(f"s_min_u32 s{sT3}, s{sU1}, s{sOFF+4*G+4}")
        e(f"s_cmp_lt_u32 s{sT}, s{sT3}")
        e(f"s_cselect_b32 s{sg}, 1, 0")
        e(f"s_cmp_lt_u32 s{sU0}, s{sSH}")
        e(f"s_cselect_b32 s{sg}, 1, s{sg}")
    e(f"s_mov_b32 s{sK}, 0")
    e(f"s_mov_b32 s{sKD}, {D}")
    stamp(5)
    e(f"s_cmp_eq_u32 s{sN}, 0")
    e("s_cbranch_scc1 L_loopdone")

    def group(G):
        q = vQ + G * 16; O = vO + G * 32; m = vM + G; ls = vLS + G
        for s in range(4):
            cc = "0" if s == 0 else f"v[{vS}:{vS+3}]"
            e(f"v_mfma_f32_16x16x32_bf16 v[{vS}:{vS+3}], v[{vKF+4*s}:{vKF+4*s+3}], v[{q+4*s}:{q+4*s+3}], {cc}")
        e(f"v_subrev_u32 v{vREL}, s{sT0}, v{vCT+G}")
        e(f"v_cndmask_b32 v{vREL}, 0, v{vREL}, s[{sMASK}:{sMASK+1}]")
        for i in range(4):
            e(f"v_cmp_lt_i32 s[{sC0+2*i}:{sC0+2*i+1}], {i}, v{vREL}")
        e("s_nop 1")
        for i in range(4):
            e(f"v_cndmask_b32 v{vS+i}, v{vNINF}, v{vS+i}, s[{sC0+2*i}:{sC0+2*i+1}]")
        e(f"v_max3_f32 v{vT}, v{vS}, v{vS+1}, v{vS+2}")
        e(f"v_max3_f32 v{vT}, v{vT}, v{vS+3}, v{m}")
        e(f"v_mov_b32 v{vT2}, v{vT}")
        e("s_nop 1")
        e(f"v_permlane32_swap_b32 v{vT}, v{vT2}")
        e(f"v_max_f32 v{vT}, v{vT}, v{vT2}")
        e(f"v_mov_b32 v{vT2}, v{vT}")
        e("s_nop 1")
        e(f"v_permlane16_swap_b32 v{vT}, v{vT2}")
        e(f"v_max_f32 v{vMN}, v{vT}, v{vT2}")
        e(f"v_sub_f32 v{vT}, v{m}, v{vMN}")
        e(f"v_mul_f32 v{vMC}, s{sC}, v{vMN}")
        e(f"v_mul_f32 v{vT}, s{sC}, v{vT}")
        e(f"v_exp_f32 v{vAL}, v{vT}")
        for i in range(4):
            e(f"v_fma_f32 v{vS+i}, v{vS+i}, s{sC}, -v{vMC}")
        for i in range(4):
            e(f"v_exp_f32 v{vS+i}, v{vS+i}")
        e(f"v_mov_b32 v{m}, v{vMN}")
        for i in range(16):
            e(f"v_pk_mul_f32 v[{O+2*i}:{O+2*i+1}], v[{O+2*i}:{O+2*i+1}], v[{vAL}:{vAL+1}] op_sel_hi:[1,0]")
        e(f"v_cvt_pk_bf16_f32 v{vP}, v{vS}, v{vS+1}")
        e(f"v_cvt_pk_bf16_f32 v{vP+1}, v{vS+2}, v{vS+3}")
        e(f"v_fma_f32 v{ls}, v{ls}, v{vAL}, v{vS}")
        e(f"v_add_f32 v{vT}, v{vS+1}, v{vS+2}")
        e(f"v_add_f32 v{ls}, v{ls}, v{vS+3}")
        e(f"v_add_f32 v{ls}, v{ls}, v{vT}")
        for ee in range(8):
            e(f"v_mfma_f32_16x16x16_bf16 v[{O+4*ee}:{O+4*ee+3}], v[{vVT+2*ee}:{vVT+2*ee+1}], v[{vP}:{vP+1}], v[{O+4*ee}:{O+4*ee+3}]")

    lab("L_loop")
    for d in range(D):
        c(f"---- stage {d}")
        e(f"v_readlane_b32 s{sOFFN}, v{vUOFF}, s{sKD}")
        e(f"v_readlane_b32 s{sINFO}, v{vINFO}, s{sK}")
        e(f"s_add_u32 m0, s{sLDSB}, {d*4096}")
        e(f"s_waitcnt vmcnt({8*D-8})")
        if d == 0 and stamps:
            e(f"s_cmp_lg_u32 s{sK}, 0")
            e(f"s_cbranch_scc1 L_nost")
            stamp(6)
            lab("L_nost")
        for s in range(4):
            e(f"ds_read_b128 v[{vKF+4*s}:{vKF+4*s+3}], v{vKA+s} offset:{d*4096}")
        vs = vVS + d * 16
        for q in range(4):
            for hi in range(2):
                sel = sPHI if hi else sPLO
                ee = 2 * q + hi
                e(f"v_perm_b32 v{vVT+2*ee}, v{vs+4+q}, v{vs+q}, s{sel}")
                e(f"v_perm_b32 v{vVT+2*ee+1}, v{vs+12+q}, v{vs+8+q}, s{sel}")
        issueV(d, sOFFN)
        e(f"s_and_b32 s{sT0}, s{sINFO}, 0xffff")
        e(f"s_lshr_b32 s{sSEG}, s{sINFO}, 16")
        e(f"s_and_b32 s{sT}, s{sSEG}, 3")
        e(f"s_lshl_b32 s{sT}, s{sT}, 2")
        e(f"s_lshl_b64 s[{sMASK}:{sMASK+1}], s[{sPAT}:{sPAT+1}], s{sT}")
        e(f"s_cmp_eq_u32 s{sSEG}, 8")
        e(f"s_cselect_b64 s[{sMASK}:{sMASK+1}], -1, s[{sMASK}:{sMASK+1}]")
        e("s_waitcnt lgkmcnt(0)")
        issueK(d, sOFFN)
        if compute:
            e(f"s_bitcmp1_b32 s{sSEG}, 2")
            e(f"s_cbranch_scc1 L_g1_{d}")
            group(0)
            e(f"s_cmp_lt_u32 s{sSEG}, 4")
            e(f"s_cbranch_scc1 L_next_{d}")
            lab(f"L_g1_{d}")
            group(1)
            lab(f"L_next_{d}")
        e(f"s_add_u32 s{sK}, s{sK}, 1")
        e(f"s_add_u32 s{sKD}, s{sKD}, 1")
        e(f"s_cmp_ge_u32 s{sK}, s{sN}")
        if d < D - 1:
            e("s_cbranch_scc1 L_loopdone")
        else:
            e("s_cbranch_scc0 L_loop")
    lab("L_loopdone")
    stamp(7)
    if not epilogue:
        e("s_branch L_end")
    c("reduce l across g, write m/l and O to LDS")
    e(f"v_mov_b32 v{vT2}, v{vLS}")
    e(f"v_mov_b32 v{vT}, v{vLS+1}")
    e(f"v_and_b32 v{vX}, 15, v{vLANE}")
    e(f"v_permlane32_swap_b32 v{vLS}, v{vT2}")
    e(f"v_permlane32_swap_b32 v{vLS+1}, v{vT}")
    e(f"v_add_f32 v{vLS}, v{vLS}, v{vT2}")
    e(f"v_add_f32 v{vLS+1}, v{vLS+1}, v{vT}")
    e(f"v_mov_b32 v{vT2}, v{vLS}")
    e(f"v_mov_b32 v{vT}, v{vLS+1}")
    e(f"s_lshl_b32 s{sT}, s{sW}, 8")
    e(f"s_add_u32 s{sT}, s{sT}, {ML}")
    e(f"v_permlane16_swap_b32 v{vLS}, v{vT2}")
    e(f"v_permlane16_swap_b32 v{vLS+1}, v{vT}")
    e(f"v_add_f32 v{vS+1}, v{vLS}, v{vT2}")
    e(f"v_add_f32 v{vS+3}, v{vLS+1}, v{vT}")
    e(f"v_lshlrev_b32 v{vY}, 3, v{vX}")
    e(f"v_add_u32 v{vY}, s{sT}, v{vY}")
    e(f"v_mov_b32 v{vS}, v{vM}")
    e(f"v_mov_b32 v{vS+2}, v{vM+1}")
    e(f"ds_write_b64 v{vY}, v[{vS}:{vS+1}]")
    e(f"ds_write_b64 v{vY}, v[{vS+2}:{vS+3}] offset:128")
    e(f"v_mul_u32_u24 v{vY}, 528, v{vX}")
    e(f"v_lshrrev_b32 v{vT}, 4, v{vLANE}")
    e(f"v_lshl_add_u32 v{vY}, v{vT}, 7, v{vY}")
    e(f"v_add_u32 v{vY}, s{sLDSB}, v{vY}")
    e("s_waitcnt vmcnt(0)")
    for G, sg in ((0, sG0), (1, sG1)):
        e(f"s_cmp_eq_u32 s{sg}, 0")
        e(f"s_cbranch_scc1 L_skipw{G}")
        for ee in range(8):
            e(f"ds_write_b128 v{vY}, v[{vO+G*32+4*ee}:{vO+G*32+4*ee+3}] offset:{G*16*528+ee*16}")
        lab(f"L_skipw{G}")
    c("reader addresses (before the barrier)")
    vR = vT
    e(f"s_lshl_b32 s{sT}, s{sW}, 2")
    e(f"v_add_u32 v{vR}, s{sT}, v{vR}")
    e(f"v_lshlrev_b32 v{vY}, 3, v{vR}")
    e(f"v_add_u32 v{vY}, {ML}, v{vY}")
    e(f"v_mul_u32_u24 v{vT2}, 528, v{vR}")
    e(f"v_lshl_add_u32 v{vT2}, v{vX}, 5, v{vT2}")
    e(f"v_add_u32 v{vMC}, {4*RS}, v{vT2}")
    e(f"s_mov_b32 s{sR1}, s30")
    e(f"s_mov_b32 s{sR1+1}, s31")
    e(f"s_mov_b32 s{sR1+2}, {16<<20}")
    e(f"s_mov_b32 s{sR2}, s26")
    e(f"s_mov_b32 s{sR2+1}, s27")
    e(f"s_lshl_b32 s{sT}, s{sH}, 9")
    e(f"s_add_u32 s{sT}, s{sT}, s{sW}")
    e(f"s_lshl_b32 s{sLO}, s{sT}, 12")
    e(f"s_lshl_b32 s{sT}, s{sH}, 3")
    e(f"s_add_u32 s{sT}, s{sT}, s{sW}")
    e(f"s_lshl_b32 s{sT}, s{sT}, 2")
    e(f"v_mov_b32 v{vREL}, s{sT}")
    e("s_waitcnt lgkmcnt(0)")
    e("s_barrier")
    stamp(8)
    e(f"s_bitcmp1_b64 s[{sCM}:{sCM+1}], s{sS}")
    e("s_cbranch_scc0 L_end")
    vML = vKF
    vOO = vO
    vTK = vP
    if TD:
        e(f"v_mov_b32 v{vTK}, 1")
        e(f"s_mov_b64 exec, 1")
        e(f"global_atomic_add v{vTK}, v{vREL}, v{vTK}, s[28:29] sc0 sc1")
        e(f"s_mov_b64 exec, -1")
    for ws in range(8):
        e(f"ds_read_b64 v[{vML+2*ws}:{vML+2*ws+1}], v{vY} offset:{ws*256}")
    for ws in range(8):
        va = vT2 if ws < 4 else vMC
        off = (ws & 3) * RS
        e(f"ds_read_b128 v[{vOO+8*ws}:{vOO+8*ws+3}], v{va} offset:{off}")
        e(f"ds_read_b128 v[{vOO+8*ws+4}:{vOO+8*ws+7}], v{va} offset:{off+16}")
        if ws == 2: e("s_waitcnt lgkmcnt(6)")
    vACC = vVT
    vMM = vACC + 8
    e(f"v_max3_f32 v{vMM}, v{vML}, v{vML+2}, v{vML+4}")
    e(f"v_max3_f32 v{vMM}, v{vMM}, v{vML+6}, v{vML+8}")
    e(f"v_max3_f32 v{vMM}, v{vMM}, v{vML+10}, v{vML+12}")
    e(f"v_max_f32 v{vMM}, v{vMM}, v{vML+14}")
    e(f"v_mul_f32 v{vMN}, s{sC}, v{vMM}")
    for ws in range(8):
        e(f"v_fma_f32 v{vML+2*ws}, v{vML+2*ws}, s{sC}, -v{vMN}")
    for ws in range(8):
        e(f"v_exp_f32 v{vML+2*ws}, v{vML+2*ws}")
    e(f"v_lshlrev_b32 v{vX}, 4, v{vLANE}")
    e(f"v_lshlrev_b32 v{vY}, 3, v{vLANE}")
    e(f"v_mul_f32 v{vACC+9}, v{vML}, v{vML+1}")
    for ws in range(1, 8):
        e(f"v_fmac_f32 v{vACC+9}, v{vML+2*ws}, v{vML+2*ws+1}")
    e("s_waitcnt lgkmcnt(0)")
    for i in range(4):
        e(f"v_pk_mul_f32 v[{vACC+2*i}:{vACC+2*i+1}], v[{vOO+2*i}:{vOO+2*i+1}], v[{vML}:{vML+1}] op_sel_hi:[1,0]")
    for ws in range(1, 8):
        for i in range(4):
            e(f"v_pk_fma_f32 v[{vACC+2*i}:{vACC+2*i+1}], v[{vOO+8*ws+2*i}:{vOO+8*ws+2*i+1}], v[{vML+2*ws}:{vML+2*ws+1}], v[{vACC+2*i}:{vACC+2*i+1}] op_sel_hi:[1,0,1]")
    stamp(9)
    e(f"s_cmp_eq_u32 s{sEXP}, 1")
    e("s_cbranch_scc1 L_final")
    e(f"s_lshl_b32 s{sT}, s{sS}, 15")
    e(f"s_add_u32 s{sT}, s{sT}, s{sLO}")
    def publish():
        e(f"buffer_store_dwordx4 v[{vACC}:{vACC+3}], v{vX}, s[{sR1}:{sR1+3}], s{sT} offen {hs}")
        e(f"buffer_store_dwordx4 v[{vACC+4}:{vACC+7}], v{vX}, s[{sR1}:{sR1+3}], s{sT} offen offset:1024 {hs}")
        e(f"buffer_store_dwordx2 v[{vACC+8}:{vACC+9}], v{vY}, s[{sR1}:{sR1+3}], s{sT} offen offset:2048 {hs}")
    if not TD:
        publish()
        e(f"v_mov_b32 v{vTK}, 1")
        e(f"s_mov_b64 exec, 1")
        e("s_waitcnt vmcnt(0)")
        stamp(10)
        e(f"global_atomic_add v{vTK}, v{vREL}, v{vTK}, s[28:29] sc0 sc1")
        e("s_waitcnt vmcnt(0)")
        e(f"v_readfirstlane_b32 s{sT}, v{vTK}")
        e(f"s_mov_b64 exec, -1")
        stamp(11)
        e(f"s_add_u32 s{sT}, s{sT}, 1")
        e(f"s_cmp_eq_u32 s{sT}, s{sEXP}")
        e("s_cbranch_scc0 L_end")
    else:
        e("s_waitcnt vmcnt(0)")
        e(f"v_readfirstlane_b32 s{sT3}, v{vTK}")
        e(f"s_sub_u32 s{sEXP}, s{sEXP}, 1")
        stamp(10)
        e(f"s_and_b32 s{sHI}, s{sT3}, 0xffff")
        e(f"s_cmp_eq_u32 s{sHI}, s{sEXP}")
        e("s_cbranch_scc1 L_last")
        publish()
        e(f"v_mov_b32 v{vTK}, 0x10000")
        e(f"s_mov_b64 exec, 1")
        e("s_waitcnt vmcnt(0)")
        e(f"global_atomic_add v{vREL}, v{vTK}, s[28:29] sc1")
        e(f"s_mov_b64 exec, -1")
        e("s_branch L_end")
        lab("L_last")
        e(f"s_lshr_b32 s{sT3}, s{sT3}, 16")
        e(f"s_cmp_eq_u32 s{sT3}, s{sEXP}")
        e("s_cbranch_scc1 L_alldone")
        e(f"s_mov_b64 exec, 1")
        lab("L_poll")
        e(f"v_mov_b32 v{vTK}, 0")
        e(f"global_atomic_add v{vTK}, v{vREL}, v{vTK}, s[28:29] sc0 sc1")
        e("s_waitcnt vmcnt(0)")
        e(f"v_readfirstlane_b32 s{sT3}, v{vTK}")
        e(f"s_lshr_b32 s{sT3}, s{sT3}, 16")
        e(f"s_cmp_eq_u32 s{sT3}, s{sEXP}")
        e("s_cbranch_scc0 L_poll")
        e(f"s_mov_b64 exec, -1")
        lab("L_alldone")
        stamp(11)
    c("last arriver: gather other partials")
    e(f"s_bitset0_b64 s[{sCM}:{sCM+1}], s{sS}")
    vG0 = vO
    sGO = sOFF
    lab("L_gather")
    e(f"s_bcnt1_i32_b64 s{sN}, s[{sCM}:{sCM+1}]")
    for i in range(NB):
        e(f"s_ff1_i32_b64 s{sT}, s[{sCM}:{sCM+1}]")
        e(f"s_bitset0_b64 s[{sCM}:{sCM+1}], s{sT}")
        e(f"s_lshl_b32 s{sT}, s{sT}, 15")
        e(f"s_add_u32 s{sGO+i}, s{sT}, s{sLO}")
        e(f"s_cmp_gt_u32 s{sN}, {i}")
        e(f"s_cselect_b32 s{sGO+i}, s{sGO+i}, 0x40000000")
        b0 = vG0 + i * 10
        e(f"buffer_load_dwordx2 v[{b0+8}:{b0+9}], v{vY}, s[{sR1}:{sR1+3}], s{sGO+i} offen offset:2048 {hl}")
    for i in range(NB):
        b0 = vG0 + i * 10
        e(f"buffer_load_dwordx4 v[{b0}:{b0+3}], v{vX}, s[{sR1}:{sR1+3}], s{sGO+i} offen {hl}")
        e(f"buffer_load_dwordx4 v[{b0+4}:{b0+7}], v{vX}, s[{sR1}:{sR1+3}], s{sGO+i} offen offset:1024 {hl}")
    e(f"v_mov_b32 v{vMN}, v{vMM}")
    e(f"s_waitcnt vmcnt({2*NB})")
    for i in range(NB):
        b0 = vG0 + i * 10
        if i:
            e(f"s_cmp_le_u32 s{sN}, {i}")
            e(f"s_cbranch_scc1 L_mx")
        e(f"v_max_f32 v{vMN}, v{vMN}, v{b0+8}")
    lab("L_mx")
    e(f"v_mul_f32 v{vMC}, s{sC}, v{vMN}")
    e(f"v_fma_f32 v{vAL}, v{vMM}, s{sC}, -v{vMC}")
    e(f"v_exp_f32 v{vAL}, v{vAL}")
    for i in range(NB):
        b0 = vG0 + i * 10
        e(f"v_fma_f32 v{b0+8}, v{b0+8}, s{sC}, -v{vMC}")
    e(f"v_mov_b32 v{vMM}, v{vMN}")
    for i in range(4):
        e(f"v_pk_mul_f32 v[{vACC+2*i}:{vACC+2*i+1}], v[{vACC+2*i}:{vACC+2*i+1}], v[{vAL}:{vAL+1}] op_sel_hi:[1,0]")
    e(f"v_mul_f32 v{vACC+9}, v{vAL}, v{vACC+9}")
    for i in range(NB):
        b0 = vG0 + i * 10
        e(f"v_exp_f32 v{b0+8}, v{b0+8}")
    stamp(12)
    for i in range(NB):
        b0 = vG0 + i * 10
        if i:
            e(f"s_cmp_le_u32 s{sN}, {i}")
            e(f"s_cbranch_scc1 L_acc")
        e(f"v_fmac_f32 v{vACC+9}, v{b0+8}, v{b0+9}")
        e(f"s_waitcnt vmcnt({2*(NB-1-i)})")
        for j in range(4):
            e(f"v_pk_fma_f32 v[{vACC+2*j}:{vACC+2*j+1}], v[{b0+2*j}:{b0+2*j+1}], v[{b0+8}:{b0+9}], v[{vACC+2*j}:{vACC+2*j+1}] op_sel_hi:[1,0,1]")
    lab("L_acc")
    e(f"s_cmp_lg_u64 s[{sCM}:{sCM+1}], 0")
    e("s_cbranch_scc1 L_gather2")
    lab("L_final")
    e(f"v_rcp_f32 v{vAL}, v{vACC+9}")
    e(f"v_lshrrev_b32 v{vY}, 4, v{vLANE}")
    e(f"v_lshlrev_b32 v{vY}, 8, v{vY}")
    e(f"v_bfe_u32 v{vX}, v{vLANE}, 2, 2")
    e(f"v_lshl_add_u32 v{vY}, v{vX}, 6, v{vY}")
    e(f"v_and_b32 v{vX}, 3, v{vLANE}")
    e(f"v_lshl_add_u32 v{vY}, v{vX}, 2, v{vY}")
    e(f"s_lshl_b32 s{sT}, s{sW}, 13")
    e(f"s_lshl_b32 s{sT3}, s{sH}, 10")
    e(f"s_add_u32 s{sT}, s{sT}, s{sT3}")
    for i in range(4):
        e(f"v_pk_mul_f32 v[{vACC+2*i}:{vACC+2*i+1}], v[{vACC+2*i}:{vACC+2*i+1}], v[{vAL}:{vAL+1}] op_sel_hi:[1,0]")
    for r in range(4):
        e(f"v_cvt_pk_bf16_f32 v{vACC+r}, v{vACC+r}, v{vACC+4+r}")
    for r in range(4):
        e(f"buffer_store_dword v{vACC+r}, v{vY}, s[{sR2}:{sR2+3}], s{sT} offen offset:{16*r}")
    stamp(13)
    if stamps: e("s_waitcnt vmcnt(0)")
    stamp(14)
    lab("L_end")
    stampflush()
    lab("L_end2")
    e("s_endpgm")
    c("---- rare paths")
    lab("L_gather2")
    e("s_waitcnt vmcnt(0)")
    e("s_branch L_gather")
    if NSPEC:
        lab("L_mispec")
        e("s_waitcnt vmcnt(0)")
        for k in range(NSPEC):
            e(f"s_add_u32 m0, s{sLDSB}, {k*4096}")
            e("s_nop 0")
            issueK(k, sRL + k)
            issueV(k, sRL + k)
        e("s_branch L_specok")
    lab("L_zq")
    c("ctx<=0: reference softmax is uniform over all positions -> zero those Q rows")
    for b in range(8):
        e(f"s_bitcmp1_b32 s{sZQ}, {b}")
        e(f"s_cbranch_scc0 L_zq{b}")
        e(f"s_lshl_b64 exec, s[{sPAT}:{sPAT+1}], {4*(b&3)}")
        for i in range(16):
            e(f"v_mov_b32 v{vQ+(b>>2)*16+i}, 0")
        lab(f"L_zq{b}")
    e("s_mov_b64 exec, -1")
    e("s_branch L_noz")
    o.append('.section .rodata,"a"')
    o.append(".p2align 6")
    o.append(f".amdhsa_kernel {NAME}_kernel")
    o.append(f"  .amdhsa_next_free_vgpr {NV}")
    o.append("  .amdhsa_next_free_sgpr 102")
    o.append(f"  .amdhsa_accum_offset {(NV+3)//4*4}")
    o.append("  .amdhsa_group_segment_fixed_size 0")
    o.append("  .amdhsa_kernarg_size 64")
    o.append("  .amdhsa_user_sgpr_count 2")
    o.append("  .amdhsa_user_sgpr_kernarg_segment_ptr 1")
    o.append("  .amdhsa_system_sgpr_workgroup_id_x 1")
    o.append(".end_amdhsa_kernel")
    return "\n".join(o) + "\n"

if __name__ == "__main__":
    kw = {}
    out = sys.argv[1]
    for a in sys.argv[2:]:
        k, v = a.split("=")
        kw[k] = v if k in ("ldpol", "hs", "hl") else (float(v) if k == "PHI" else int(v))
    open(out, "w").write(gen(**kw))
```

```python
import sys, math, struct
NAME = "standalone__paged_block_table_kv_radixattention__decode"
def f2u(f): return struct.unpack("<I", struct.pack("<f", f))[0]

def gen(D=2, stamps=0, compute=1, ldpol="nt", epilogue=1, NSPEC=1, PHI=0.89, NB=12, TD=0, X3=0, X7=0, HX=1, EB=1, PHI2=0.88, XA=1, ND=1, NW=7, hs="sc0 sc1", hl="sc0 sc1"):
    o = []
    def e(s): o.append("    " + s)
    def lab(s): o.append(s + ":")
    def c(s): o.append("    ; " + s)

    RS = 16896
    ML = 8 * RS
    TAB = ML + 2048
    QB = TAB + 16384
    PSL = QB + 8192
    LDS = PSL + 64
    KVB = 75497472
    CSC = math.log2(math.e) / math.sqrt(128.0)

    ectx = [8192 - ((i + 1) * 2654435761) % 2048 for i in range(8)]
    eP = 256
    enb = [(x + 15) // 16 for x in ectx]
    eS = eP
    eoff = [eS]
    for b in range(8): eoff.append(eoff[-1] + enb[b] - eP)
    ePv = eoff[8] - eS
    eU = eoff[8]

    sW, sH, sS = 3, 4, 5
    sK, sKD, sN = 6, 7, 8
    sP, sSH, sNSL, sU0, sU1 = 9, 10, 11, 12, 13
    sC = 14
    sLDSB = 15
    sCTX = 32
    sKR, sVR, sR1, sR2 = 40, 44, 48, 52
    sOFF = 56
    sCB = 65
    sT0, sSEG, sINFO, sOFFN = 73, 74, 75, 76
    sPLO, sPHI = 77, 78
    sT = 79
    sMASK = 80
    sPAT = 82
    sC0 = 84
    sCM, sLO, sHI = 92, 94, 95
    sEXP = 17
    sT2 = 96
    sG0, sG1 = 98, 99
    sT3 = 100
    sST = 101
    sZQ = 16
    sSP = 22
    vLANE = 1
    vKD = 2; vVO = 6; vKA = 8
    vUOFF, vINFO = 12, 13
    vCT = 14; vNINF = 16; vM = 17; vLS = 19
    vT, vAL, vT2 = 21, 22, 24
    vMC, vREL, vMN = 25, 26, 27
    vP = 28; vX, vY = 30, 31
    vS = 32; vKF = 36; vVT = 52; vQ = 68; vO = 100; vVS = 164
    NV = max(vVS + 16 * D, vQ + NB * 12)
    vNON = 0
    sCAND = 18
    sNON = 19
    vSX, vSY = NV, NV + 1
    if stamps: NV += 2

    def stamp(idx):
        if not stamps: return
        e(f"s_memrealtime s[{sT2}:{sT2+1}]")
        e(f"s_waitcnt lgkmcnt(0)")
        e(f"v_writelane_b32 v{vSX}, s{sT2}, {idx}")
    def stampflush():
        if not stamps: return
        e(f"s_lshl_b32 s{sST}, s2, 3")
        e(f"s_add_u32 s{sST}, s{sST}, s{sW}")
        e(f"s_lshl_b32 s{sST}, s{sST}, 6")
        e(f"s_add_u32 s{sST}, s{sST}, {301989888 - (1<<20)}")
        e(f"s_mov_b64 exec, 0xffff")
        e(f"v_lshlrev_b32 v{vSY}, 2, v{vLANE}")
        e(f"v_add_u32 v{vSY}, s{sST}, v{vSY}")
        e(f"global_store_dword v{vSY}, v{vSX}, s[30:31]")

    def plan_slices(S, U, a):
        a0, a1, a2, a3, a4, a5, vA, vE = [a + i for i in range(8)]
        e(f"v_cvt_f32_u32 v{a0}, {U}")
        e(f"v_cvt_f32_u32 v{a1}, {S}")
        e(f"v_cvt_f32_u32 v{a2}, s{sNSL}")
        e(f"v_rcp_f32 v{a3}, v{a0}")
        e(f"v_mul_f32 v{a1}, 0x{f2u(1.0/PHI):08x}, v{a1}")
        e(f"v_mul_f32 v{a1}, v{a1}, v{a2}")
        e(f"v_mul_f32 v{a1}, v{a1}, v{a3}")
        e(f"v_ceil_f32 v{a1}, v{a1}")
        e(f"v_min_f32 v{a1}, v{a1}, v{a2}")
        e(f"v_mov_b32 v{a3}, 0x{f2u(PHI-1.0):08x}")
        if PHI2 != 1.0:
            e(f"v_subrev_f32 v{a4}, 0x{f2u(32.0):08x}, v{a2}")
            e(f"v_max_f32 v{a4}, 0, v{a4}")
            e(f"v_mul_f32 v{a4}, 0x{f2u(PHI2-1.0):08x}, v{a4}")
            e(f"v_add_f32 v{a2}, v{a2}, v{a4}")
        e(f"v_fma_f32 v{a2}, v{a1}, v{a3}, v{a2}")
        e(f"v_rcp_f32 v{a2}, v{a2}")
        e(f"v_cvt_f32_u32 v{a4}, v{vLANE}")
        e(f"v_mul_f32 v{a2}, v{a2}, v{a0}")
        e(f"v_add_f32 v{a5}, 1.0, v{a4}")
        for x, d in ((a4, vA), (a5, vE)):
            e(f"v_min_f32 v{d}, v{x}, v{a1}")
            e(f"v_fma_f32 v{d}, v{d}, v{a3}, v{x}")
            if PHI2 != 1.0:
                e(f"v_subrev_f32 v{x}, 0x{f2u(32.0):08x}, v{x}")
                e(f"v_max_f32 v{x}, 0, v{x}")
                e(f"v_mul_f32 v{x}, 0x{f2u(PHI2-1.0):08x}, v{x}")
                e(f"v_add_f32 v{d}, v{d}, v{x}")
            e(f"v_fma_f32 v{d}, v{d}, v{a2}, 0.5")
            e(f"v_cvt_u32_f32 v{d}, v{d}")
        e(f"v_add_u32 v{a4}, 1, v{vLANE}")
        e(f"v_mov_b32 v{a0}, {U}")
        e(f"v_cmp_le_u32 vcc, s{sNSL}, v{a4}")
        e(f"v_min_u32 v{vA}, v{vA}, v{a0}")
        e(f"v_min_u32 v{vE}, v{vE}, v{a0}")
        e(f"v_cndmask_b32 v{vE}, v{vE}, v{a0}, vcc")
        e(f"v_cmp_le_u32 vcc, s{sNSL}, v{vLANE}")
        e("s_nop 1")
        e(f"v_cndmask_b32 v{vA}, v{vA}, v{a0}, vcc")

    def issueV(d, soff):
        for i in range(4):
            e(f"buffer_load_dwordx4 v[{vVS+d*16+i*4}:{vVS+d*16+i*4+3}], v{vVO+(i>>1)}, s[{sVR}:{sVR+3}], s{soff} offen offset:{(i&1)*2048} {ldpol}")
    def issueK(d, soff):
        for i in range(4):
            e(f"buffer_load_dwordx4 v{vKD+i}, s[{sKR}:{sKR+3}], s{soff} offen offset:{i*1024} {ldpol} lds")

    hdr = open(f"cdna_kernels/{NAME}.s.ref").read().split("\n")
    for ln in hdr:
        if ln.startswith("; @launch"): break
        o.append(ln)
    o.append(f"; @launch grid=(256,1,1) block=(512,1,1) lds={LDS}")
    o.append('.amdgcn_target "amdgcn-amd-amdhsa--gfx950"')
    o.append(".text")
    o.append(f".globl {NAME}_kernel")
    o.append(".p2align 8")
    o.append(f".type {NAME}_kernel,@function")
    lab(f"{NAME}_kernel")
    e("s_cmp_ge_u32 s2, 256")
    e("s_cbranch_scc1 L_end2")
    if stamps: e(f"v_mov_b32 v{vSX}, 0")
    stamp(0)
    e("s_load_dwordx16 s[16:31], s[0:1], 0")
    e(f"v_lshrrev_b32 v{vT}, 6, v0")
    e(f"v_and_b32 v{vLANE}, 63, v0")
    e(f"v_readfirstlane_b32 s{sW}, v{vT}")
    e(f"s_and_b32 s{sH}, s2, 7")
    if HX: e(f"s_xor_b32 s{sH}, s{sH}, {HX}")
    e(f"s_lshr_b32 s{sS}, s2, 3")
    if XA:
        e(f"s_and_b32 s{sT}, s{sH}, 3")
        e(f"s_cmp_eq_u32 s{sT}, 1")
        e(f"s_cselect_b32 s{sNSL}, 35, 31")
        e(f"s_cmp_ge_u32 s{sS}, s{sNSL}")
        e(f"s_cbranch_scc0 L_map2")
        e(f"s_max_u32 s{sT}, s{sT}, 1")
        e(f"s_add_u32 s{sS}, s{sT}, 31")
        e(f"s_and_b32 s{sH}, s{sH}, 4")
        e(f"s_or_b32 s{sH}, s{sH}, 1")
        e(f"s_mov_b32 s{sNSL}, 35")
        lab("L_map2")
    else:
        e(f"s_mov_b32 s{sNSL}, 32")
    for hh, X in ((3, X3), (7, X7)):
        if not X: continue
        e(f"s_cmp_eq_u32 s{sH}, {hh}")
        e(f"s_cselect_b32 s{sNSL}, {32-X}, s{sNSL}")
    if X3 or X7:
        e(f"s_cmp_ge_u32 s{sS}, s{sNSL}")
        e(f"s_cbranch_scc0 L_map")
        e(f"s_sub_u32 s{sS}, s{sS}, s{sNSL}")
        e(f"s_add_u32 s{sS}, s{sS}, 32")
        e(f"s_sub_u32 s{sH}, s{sH}, 2")
        lab("L_map")
    for hh, X in ((1, X3), (5, X7)):
        if not X: continue
        e(f"s_cmp_eq_u32 s{sH}, {hh}")
        e(f"s_cselect_b32 s{sNSL}, {32+X}, s{sNSL}")
    vRow, vG = vVT, vVT + 1
    t0, t1, t2 = vVT + 2, vVT + 3, vVT + 4
    vQO = vVT + 5
    e(f"v_and_b32 v{vRow}, 15, v{vLANE}")
    e(f"v_lshrrev_b32 v{vG}, 4, v{vLANE}")
    e(f"v_lshlrev_b32 v{vX}, 2, v0")
    e(f"s_lshl_b32 s{sT}, s{sH}, 8")
    e(f"s_mul_i32 s{sLDSB}, s{sW}, {RS}")
    e(f"v_lshlrev_b32 v{vVO}, 13, v{vG}")
    e(f"v_lshl_add_u32 v{vVO}, v{vRow}, 4, v{vVO}")
    e(f"v_add_u32 v{vVO}, s{sT}, v{vVO}")
    e(f"v_add_u32 v{vVO+1}, 0x1000, v{vVO}")
    e(f"v_xor_b32 v{t0}, v{vG}, v{vRow}")
    e(f"v_lshlrev_b32 v{t1}, 11, v{vG}")
    e(f"v_add_u32 v{t1}, s{sT}, v{t1}")
    for i in range(4):
        if i: e(f"v_xor_b32 v{t2}, {4*i}, v{t0}")
        e(f"v_lshl_add_u32 v{vKD+i}, v{t2 if i else t0}, 4, v{t1}")
        if i: e(f"v_add_u32 v{vKD+i}, {i*8192-i*1024}, v{vKD+i}")
    e(f"v_add_u32 v{vY}, 0x1000, v{vX}")
    e(f"v_add_u32 v{vT}, 0x2000, v{vX}")
    e(f"v_add_u32 v{vT2}, 0x3000, v{vX}")
    e(f"s_and_b32 s{sT3}, s{sW}, 3")
    e(f"s_lshl_b32 s{sT3}, s{sT3}, 2")
    e(f"v_xor_b32 v{vQO}, s{sT3}, v{t0}")
    e(f"v_lshlrev_b32 v{vQO}, 4, v{vQO}")
    e(f"v_lshl_add_u32 v{vQO}, v{vG}, 8, v{vQO}")
    e(f"s_lshl_b32 s{sLO}, s{sW}, 13")
    e(f"s_lshl_b32 s{sT3}, s{sH}, 10")
    e(f"s_add_u32 s{sLO}, s{sLO}, s{sT3}")
    e(f"s_lshl_b32 s{sHI}, s{sW}, 10")
    e(f"s_add_u32 s{sHI}, s{sHI}, {QB}")
    for r, n in ((sR1, 16384), (sR2, 65536), (sKR, KVB), (sVR, KVB)):
        e(f"s_mov_b32 s{r+2}, {n}")
        e(f"s_mov_b32 s{r+3}, 0x00020000")
    if NSPEC:
        c("predicted first units (prefetch hint only)")
        plan_slices(str(eS), str(eU), vKF)
        e("s_nop 0")
        e(f"v_readlane_b32 s{sT}, v{vKF+6}, s{sS}")
        e(f"s_add_u32 s{sT}, s{sT}, s{sW}")
        for k in range(NSPEC):
            if k: e(f"s_add_u32 s{sT}, s{sT}, 8")
            e(f"s_mov_b32 s{sT3}, 0")
            for b in range(1, 8):
                e(f"s_cmp_ge_u32 s{sT}, {eoff[b]}")
                e(f"s_cselect_b32 s{sT3}, {eP + 256*b - eoff[b]}, s{sT3}")
            e(f"s_add_u32 s{sT3}, s{sT3}, s{sT}")
            e(f"s_lshl_b32 s{sC0+k}, s{sT3}, 15")
    e(f"s_mov_b32 m0, s{sHI}")
    e("s_waitcnt lgkmcnt(0)")
    stamp(1)
    e(f"s_mov_b32 s{sR1}, s22")
    e(f"s_mov_b32 s{sR1+1}, s23")
    e(f"s_load_dwordx8 s[{sCTX}:{sCTX+7}], s[24:25], 0")
    vTB = vKF
    for b in range(8):
        va = [vX, vY, vT, vT2][b >> 1]
        e(f"buffer_load_dword v{vTB+b}, v{va}, s[{sR1}:{sR1+3}], 0 offen offset:{(b&1)*2048}")
    e(f"s_mov_b32 s{sR2}, s16")
    e(f"s_mov_b32 s{sR2+1}, s17")
    e(f"s_mov_b32 s{sKR}, s18")
    e(f"s_mov_b32 s{sKR+1}, s19")
    e(f"buffer_load_dwordx4 v{vQO}, s[{sR2}:{sR2+3}], s{sLO} offen lds")
    e(f"s_mov_b32 s{sVR}, s20")
    e(f"s_mov_b32 s{sVR+1}, s21")
    if EB: e("s_barrier")
    for k in range(NSPEC):
        e(f"s_add_u32 m0, s{sLDSB}, {k*4096}")
        e("s_nop 0")
        issueK(k, sC0 + k)
        issueV(k, sC0 + k)
    c("constants")
    e(f"s_mov_b32 s{sC}, 0x{f2u(CSC):08x}")
    e(f"s_mov_b32 s{sPLO}, 0x05040100")
    e(f"s_mov_b32 s{sPHI}, 0x07060302")
    e(f"s_mov_b32 s{sPAT}, 0x000F000F")
    e(f"s_mov_b32 s{sPAT+1}, 0x000F000F")
    e(f"v_lshlrev_b32 v{t1}, 8, v{vRow}")
    e(f"v_add_u32 v{t1}, s{sLDSB}, v{t1}")
    for s in range(4):
        if s: e(f"v_xor_b32 v{t2}, {4*s}, v{t0}")
        e(f"v_lshl_add_u32 v{vKA+s}, v{t2 if s else t0}, 4, v{t1}")
    e(f"v_mov_b32 v{vNINF}, 0xff800000")
    e(f"v_mov_b32 v{vM}, 0xf1800000")
    e(f"v_mov_b32 v{vM+1}, 0xf1800000")
    e(f"v_mov_b32 v{vLS}, 0")
    e(f"v_mov_b32 v{vLS+1}, 0")
    for i in range(64):
        e(f"v_mov_b32 v{vO+i}, 0")
    e(f"v_add_u32 v{vX}, {TAB}, v{vX}")
    c("ctx scalars")
    e("s_waitcnt lgkmcnt(0)")
    e(f"s_mov_b32 s{sSH}, 0")
    e(f"s_mov_b32 s{sZQ}, 0")
    for b in range(8):
        r = sCTX + b
        e(f"s_cmp_lt_i32 s{r}, 1")
        e(f"s_cselect_b32 s{r}, 8192, s{r}")
        e(f"s_cselect_b32 s{sT}, {1<<b}, 0")
        e(f"s_or_b32 s{sZQ}, s{sZQ}, s{sT}")
        e(f"s_min_i32 s{r}, s{r}, 8192")
        e(f"s_add_u32 s{sCB+b}, s{r}, 15")
        e(f"s_lshr_b32 s{sCB+b}, s{sCB+b}, 4")
        e(f"s_max_u32 s{sSH}, s{sSH}, s{sCB+b}")
    for b in range(4):
        e(f"s_lshl_b64 exec, s[{sPAT}:{sPAT+1}], {4*b}")
        e(f"v_mov_b32 v{vCT}, s{sCTX+b}")
        e(f"v_mov_b32 v{vCT+1}, s{sCTX+4+b}")
    e("s_mov_b64 exec, -1")
    e(f"v_lshlrev_b32 v{t1}, 2, v{vG}")
    e(f"v_sub_u32 v{vCT}, v{vCT}, v{t1}")
    e(f"v_sub_u32 v{vCT+1}, v{vCT+1}, v{t1}")
    e(f"s_lshl_b32 s{sT}, s{sW}, 2")
    e(f"s_add_u32 s{sT}, s{sT}, {PSL}")
    e(f"v_mov_b32 v{vY}, s{sT}")
    e(f"s_lshl_b32 s{sT}, s{sW}, 6")
    c("table arrived?")
    e(f"s_waitcnt vmcnt({1+8*NSPEC})")
    stamp(2)
    for b in range(1, 8):
        e(f"v_xor_b32 v{vTB+8+b}, v{vTB}, v{vTB+b}")
    e(f"v_or3_b32 v{vTB+9}, v{vTB+9}, v{vTB+10}, v{vTB+11}")
    e(f"v_or3_b32 v{vTB+12}, v{vTB+12}, v{vTB+13}, v{vTB+14}")
    e(f"v_or3_b32 v{vTB+9}, v{vTB+9}, v{vTB+12}, v{vTB+15}")
    e(f"v_cmp_ne_u32 vcc, 0, v{vTB+9}")
    for b in range(0, 8, 2):
        e(f"ds_write2st64_b32 v{vX}, v{vTB+b}, v{vTB+b+1} offset0:{b*8} offset1:{(b+1)*8}")
    e(f"s_ff1_i32_b64 s{sP}, vcc")
    e(f"s_add_u32 s{sP}, s{sP}, s{sT}")
    e(f"s_cmp_eq_u64 vcc, 0")
    e(f"s_cselect_b32 s{sP}, 512, s{sP}")
    e(f"v_mov_b32 v{vT}, s{sP}")
    e(f"ds_write_b32 v{vY}, v{vT}")
    e(f"v_mov_b32 v{vY}, {PSL}")
    e(f"s_waitcnt vmcnt({8*NSPEC}) lgkmcnt(0)")
    e("s_barrier")
    stamp(3)
    e(f"ds_read_b128 v[{vKF}:{vKF+3}], v{vY}")
    e(f"ds_read_b128 v[{vKF+4}:{vKF+7}], v{vY} offset:16")
    c("Q fragments from LDS")
    e(f"s_sub_u32 s{sT}, {QB}, s{sLDSB}")
    for s in range(4):
        e(f"v_add_u32 v{vS+s}, s{sT}, v{vKA+s}")
    for G in range(2):
        for s in range(4):
            e(f"ds_read_b128 v[{vQ+G*16+4*s}:{vQ+G*16+4*s+3}], v{vS+s} offset:{G*4096}")
    e("s_waitcnt lgkmcnt(8)")
    e(f"v_min3_u32 v{vKF}, v{vKF}, v{vKF+1}, v{vKF+2}")
    e(f"v_min3_u32 v{vKF+3}, v{vKF+3}, v{vKF+4}, v{vKF+5}")
    e(f"v_min3_u32 v{vKF}, v{vKF}, v{vKF+6}, v{vKF+7}")
    e(f"v_min_u32 v{vKF}, v{vKF}, v{vKF+3}")
    e("s_nop 0")
    e(f"v_readfirstlane_b32 s{sP}, v{vKF}")
    c("plan")
    e(f"s_min_u32 s{sSH}, s{sSH}, s{sP}")
    e(f"s_mov_b32 s{sOFF}, s{sSH}")
    for b in range(8):
        e(f"s_sub_i32 s{sT}, s{sCB+b}, s{sP}")
        e(f"s_max_i32 s{sT}, s{sT}, 0")
        e(f"s_add_u32 s{sOFF+b+1}, s{sOFF+b}, s{sT}")
        e(f"s_sub_i32 s{sCB+b}, s{sP}, s{sOFF+b}")
        if b: e(f"s_addk_i32 s{sCB+b}, {512*b}")
    sU = sOFF + 8
    plan_slices(f"s{sSH}", f"s{sU}", vKF)
    vA, vE = vKF + 6, vKF + 7
    e("s_nop 0")
    e(f"v_readlane_b32 s{sU0}, v{vA}, s{sS}")
    e(f"v_readlane_b32 s{sU1}, v{vE}, s{sS}")
    vU, vCc = vKF, vKF + 1
    e(f"v_lshlrev_b32 v{vU}, 3, v{vLANE}")
    e(f"v_mov_b32 v{vCc}, 0")
    e(f"s_add_u32 s{sT}, s{sU0}, s{sW}")
    e(f"v_add_u32 v{vU}, s{sT}, v{vU}")
    for b in range(8):
        e(f"v_cmpx_le_u32 vcc, s{sOFF+b}, v{vU}")
        e(f"v_mov_b32 v{vCc}, s{sCB+b}")
    e("s_mov_b64 exec, -1")
    e(f"v_add_u32 v{vCc}, v{vU}, v{vCc}")
    e(f"v_and_b32 v{vCc}, 4095, v{vCc}")
    e(f"v_lshlrev_b32 v{vX}, 2, v{vCc}")
    e(f"v_add_u32 v{vX}, {TAB}, v{vX}")
    e(f"ds_read_b32 v{vY}, v{vX}")
    e(f"v_and_b32 v{vINFO}, 511, v{vCc}")
    e(f"v_lshlrev_b32 v{vINFO}, 4, v{vINFO}")
    e(f"v_lshrrev_b32 v{vT}, 9, v{vCc}")
    e(f"v_cmp_gt_u32 vcc, s{sSH}, v{vU}")
    e(f"v_mov_b32 v{vT2}, 8")
    e(f"v_cmp_gt_u32 s[{sT2}:{sT2+1}], s{sU1}, v{vU}")
    e(f"v_cndmask_b32 v{vT}, v{vT}, v{vT2}, vcc")
    e(f"v_lshl_or_b32 v{vINFO}, v{vT}, 16, v{vINFO}")
    e(f"v_mov_b32 v{vT2}, 0x80000000")
    e(f"s_bcnt1_i32_b64 s{sN}, s[{sT2}:{sT2+1}]")
    e("s_waitcnt lgkmcnt(0)")
    e(f"v_lshlrev_b32 v{vY}, 15, v{vY}")
    e(f"v_cndmask_b32 v{vUOFF}, v{vT2}, v{vY}, s[{sT2}:{sT2+1}]")
    e("s_nop 0")
    sRL = sC0 + 4
    for d in range(D):
        e(f"v_readlane_b32 s{sRL+d}, v{vUOFF}, {d}")
    if NSPEC:
        e("s_nop 0")
        for k in range(NSPEC):
            e(f"s_cmp_lg_u32 s{sRL+k}, s{sC0+k}")
            e("s_cbranch_scc1 L_mispec")
        lab("L_specok")
    else:
        e("s_nop 1")
    for d in range(NSPEC, D):
        e(f"s_add_u32 m0, s{sLDSB}, {d*4096}")
        e("s_nop 0")
        issueK(d, sRL + d)
        issueV(d, sRL + d)
    stamp(4)
    c("off critical path")
    c("launch nonce: first arriver's clock, agreed through d_debug")
    e(f"s_cmp_lg_u32 s{sW}, {NW}")
    e("s_cbranch_scc1 L_nonon")
    e(f"s_memrealtime s[{sT2}:{sT2+1}]")
    e(f"v_mov_b32 v{vP+1}, 0")
    e(f"v_mov_b32 v{vREL}, 128")
    e("s_waitcnt lgkmcnt(0)")
    e(f"s_or_b32 s{sCAND}, s{sT2}, 1")
    e(f"v_mov_b32 v{vP}, s{sCAND}")
    e("s_mov_b64 exec, 1")
    e(f"global_atomic_cmpswap v{vNON}, v{vREL}, v[{vP}:{vP+1}], s[28:29] sc0 sc1")
    e("s_mov_b64 exec, -1")
    lab("L_nonon")
    e(f"s_cmp_eq_u32 s{sZQ}, 0")
    e("s_cbranch_scc0 L_zq")
    lab("L_noz")
    e(f"s_mov_b32 s{sLO}, s{sOFF}")
    e(f"s_mov_b32 s{sHI}, s{sOFF+1}")
    for b in range(1, 8):
        e(f"s_cmp_eq_u32 s{sW}, {b}")
        e(f"s_cselect_b32 s{sLO}, s{sOFF+b}, s{sLO}")
        e(f"s_cselect_b32 s{sHI}, s{sOFF+b+1}, s{sHI}")
    e(f"v_cmp_lt_u32 s[{sC0}:{sC0+1}], v{vA}, v{vE}")
    e(f"v_cmp_gt_u32 s[{sC0+2}:{sC0+3}], s{sSH}, v{vA}")
    e(f"v_cmp_gt_u32 s[{sC0+4}:{sC0+5}], s{sHI}, v{vA}")
    e(f"v_cmp_lt_u32 s[{sC0+6}:{sC0+7}], s{sLO}, v{vE}")
    e(f"s_and_b64 s[{sC0+4}:{sC0+5}], s[{sC0+4}:{sC0+5}], s[{sC0+6}:{sC0+7}]")
    e(f"s_cmp_lt_u32 s{sLO}, s{sHI}")
    e(f"s_cselect_b64 s[{sC0+4}:{sC0+5}], s[{sC0+4}:{sC0+5}], 0")
    e(f"s_or_b64 s[{sC0+2}:{sC0+3}], s[{sC0+2}:{sC0+3}], s[{sC0+4}:{sC0+5}]")
    e(f"s_and_b64 s[{sCM}:{sCM+1}], s[{sC0+2}:{sC0+3}], s[{sC0}:{sC0+1}]")
    e(f"s_bcnt1_i32_b64 s{sEXP}, s[{sCM}:{sCM+1}]")
    for G, sg in ((0, sG0), (1, sG1)):
        e(f"s_max_u32 s{sT}, s{sU0}, s{sOFF+4*G}")
        e(f"s_min_u32 s{sT3}, s{sU1}, s{sOFF+4*G+4}")
        e(f"s_cmp_lt_u32 s{sT}, s{sT3}")
        e(f"s_cselect_b32 s{sg}, 1, 0")
        e(f"s_cmp_lt_u32 s{sU0}, s{sSH}")
        e(f"s_cselect_b32 s{sg}, 1, s{sg}")
    e(f"s_mov_b32 s{sK}, 0")
    e(f"s_mov_b32 s{sKD}, {D}")
    stamp(5)
    e(f"s_cmp_eq_u32 s{sN}, 0")
    e("s_cbranch_scc1 L_loopdone")

    def group(G):
        q = vQ + G * 16; O = vO + G * 32; m = vM + G; ls = vLS + G
        for s in range(4):
            cc = "0" if s == 0 else f"v[{vS}:{vS+3}]"
            e(f"v_mfma_f32_16x16x32_bf16 v[{vS}:{vS+3}], v[{vKF+4*s}:{vKF+4*s+3}], v[{q+4*s}:{q+4*s+3}], {cc}")
        e(f"v_subrev_u32 v{vREL}, s{sT0}, v{vCT+G}")
        e(f"v_cndmask_b32 v{vREL}, 0, v{vREL}, s[{sMASK}:{sMASK+1}]")
        for i in range(4):
            e(f"v_cmp_lt_i32 s[{sC0+2*i}:{sC0+2*i+1}], {i}, v{vREL}")
        e("s_nop 1")
        for i in range(4):
            e(f"v_cndmask_b32 v{vS+i}, v{vNINF}, v{vS+i}, s[{sC0+2*i}:{sC0+2*i+1}]")
        e(f"v_max3_f32 v{vT}, v{vS}, v{vS+1}, v{vS+2}")
        e(f"v_max3_f32 v{vT}, v{vT}, v{vS+3}, v{m}")
        e(f"v_mov_b32 v{vT2}, v{vT}")
        e("s_nop 1")
        e(f"v_permlane32_swap_b32 v{vT}, v{vT2}")
        e(f"v_max_f32 v{vT}, v{vT}, v{vT2}")
        e(f"v_mov_b32 v{vT2}, v{vT}")
        e("s_nop 1")
        e(f"v_permlane16_swap_b32 v{vT}, v{vT2}")
        e(f"v_max_f32 v{vMN}, v{vT}, v{vT2}")
        e(f"v_sub_f32 v{vT}, v{m}, v{vMN}")
        e(f"v_mul_f32 v{vMC}, s{sC}, v{vMN}")
        e(f"v_mul_f32 v{vT}, s{sC}, v{vT}")
        e(f"v_exp_f32 v{vAL}, v{vT}")
        for i in range(4):
            e(f"v_fma_f32 v{vS+i}, v{vS+i}, s{sC}, -v{vMC}")
        for i in range(4):
            e(f"v_exp_f32 v{vS+i}, v{vS+i}")
        e(f"v_mov_b32 v{m}, v{vMN}")
        for i in range(16):
            e(f"v_pk_mul_f32 v[{O+2*i}:{O+2*i+1}], v[{O+2*i}:{O+2*i+1}], v[{vAL}:{vAL+1}] op_sel_hi:[1,0]")
        e(f"v_cvt_pk_bf16_f32 v{vP}, v{vS}, v{vS+1}")
        e(f"v_cvt_pk_bf16_f32 v{vP+1}, v{vS+2}, v{vS+3}")
        e(f"v_fma_f32 v{ls}, v{ls}, v{vAL}, v{vS}")
        e(f"v_add_f32 v{vT}, v{vS+1}, v{vS+2}")
        e(f"v_add_f32 v{ls}, v{ls}, v{vS+3}")
        e(f"v_add_f32 v{ls}, v{ls}, v{vT}")
        for ee in range(8):
            e(f"v_mfma_f32_16x16x16_bf16 v[{O+4*ee}:{O+4*ee+3}], v[{vVT+2*ee}:{vVT+2*ee+1}], v[{vP}:{vP+1}], v[{O+4*ee}:{O+4*ee+3}]")

    lab("L_loop")
    for d in range(D):
        c(f"---- stage {d}")
        e(f"v_readlane_b32 s{sOFFN}, v{vUOFF}, s{sKD}")
        e(f"v_readlane_b32 s{sINFO}, v{vINFO}, s{sK}")
        e(f"s_add_u32 m0, s{sLDSB}, {d*4096}")
        if ND:
            e(f"s_sub_u32 s{sT}, s{sN}, s{sK}")
            for r in range(D - 1, 0, -1):
                e(f"s_cmp_gt_u32 s{sT}, {r}")
                e(f"s_cbranch_scc1 L_w{r}_{d}")
            for r in range(0, D):
                if r: lab(f"L_w{r}_{d}")
                e(f"s_waitcnt vmcnt({8*r})")
            e(f"s_cmp_lt_u32 s{sKD}, s{sN}")
            e(f"s_cselect_b32 s{sT3}, 1, 0")
        else:
            e(f"s_waitcnt vmcnt({8*D-8})")
        if d == 0 and stamps:
            e(f"s_cmp_lg_u32 s{sK}, 0")
            e(f"s_cbranch_scc1 L_nost")
            stamp(6)
            lab("L_nost")
        for s in range(4):
            e(f"ds_read_b128 v[{vKF+4*s}:{vKF+4*s+3}], v{vKA+s} offset:{d*4096}")
        vs = vVS + d * 16
        for q in range(4):
            for hi in range(2):
                sel = sPHI if hi else sPLO
                ee = 2 * q + hi
                e(f"v_perm_b32 v{vVT+2*ee}, v{vs+4+q}, v{vs+q}, s{sel}")
                e(f"v_perm_b32 v{vVT+2*ee+1}, v{vs+12+q}, v{vs+8+q}, s{sel}")
        if ND:
            e(f"s_cmp_eq_u32 s{sT3}, 0")
            e(f"s_cbranch_scc1 L_nv_{d}")
        issueV(d, sOFFN)
        if ND: lab(f"L_nv_{d}")
        e(f"s_and_b32 s{sT0}, s{sINFO}, 0xffff")
        e(f"s_lshr_b32 s{sSEG}, s{sINFO}, 16")
        e(f"s_and_b32 s{sT}, s{sSEG}, 3")
        e(f"s_lshl_b32 s{sT}, s{sT}, 2")
        e(f"s_lshl_b64 s[{sMASK}:{sMASK+1}], s[{sPAT}:{sPAT+1}], s{sT}")
        e(f"s_cmp_eq_u32 s{sSEG}, 8")
        e(f"s_cselect_b64 s[{sMASK}:{sMASK+1}], -1, s[{sMASK}:{sMASK+1}]")
        e("s_waitcnt lgkmcnt(0)")
        if ND:
            e(f"s_cmp_eq_u32 s{sT3}, 0")
            e(f"s_cbranch_scc1 L_nk_{d}")
        issueK(d, sOFFN)
        if ND: lab(f"L_nk_{d}")
        if compute:
            e(f"s_bitcmp1_b32 s{sSEG}, 2")
            e(f"s_cbranch_scc1 L_g1_{d}")
            group(0)
            e(f"s_cmp_lt_u32 s{sSEG}, 4")
            e(f"s_cbranch_scc1 L_next_{d}")
            lab(f"L_g1_{d}")
            group(1)
            lab(f"L_next_{d}")
        e(f"s_add_u32 s{sK}, s{sK}, 1")
        e(f"s_add_u32 s{sKD}, s{sKD}, 1")
        e(f"s_cmp_ge_u32 s{sK}, s{sN}")
        if d < D - 1:
            e("s_cbranch_scc1 L_loopdone")
        else:
            e("s_cbranch_scc0 L_loop")
    lab("L_loopdone")
    stamp(7)
    if not epilogue:
        e("s_branch L_end")
    c("reduce l across g, write m/l and O to LDS")
    e(f"v_mov_b32 v{vT2}, v{vLS}")
    e(f"v_mov_b32 v{vT}, v{vLS+1}")
    e(f"v_and_b32 v{vX}, 15, v{vLANE}")
    e(f"v_permlane32_swap_b32 v{vLS}, v{vT2}")
    e(f"v_permlane32_swap_b32 v{vLS+1}, v{vT}")
    e(f"v_add_f32 v{vLS}, v{vLS}, v{vT2}")
    e(f"v_add_f32 v{vLS+1}, v{vLS+1}, v{vT}")
    e(f"v_mov_b32 v{vT2}, v{vLS}")
    e(f"v_mov_b32 v{vT}, v{vLS+1}")
    e(f"s_lshl_b32 s{sT}, s{sW}, 8")
    e(f"s_add_u32 s{sT}, s{sT}, {ML}")
    e(f"v_permlane16_swap_b32 v{vLS}, v{vT2}")
    e(f"v_permlane16_swap_b32 v{vLS+1}, v{vT}")
    e(f"v_add_f32 v{vS+1}, v{vLS}, v{vT2}")
    e(f"v_add_f32 v{vS+3}, v{vLS+1}, v{vT}")
    e(f"v_lshlrev_b32 v{vY}, 3, v{vX}")
    e(f"v_add_u32 v{vY}, s{sT}, v{vY}")
    e(f"v_mov_b32 v{vS}, v{vM}")
    e(f"v_mov_b32 v{vS+2}, v{vM+1}")
    e(f"ds_write_b64 v{vY}, v[{vS}:{vS+1}]")
    e(f"ds_write_b64 v{vY}, v[{vS+2}:{vS+3}] offset:128")
    e(f"v_mul_u32_u24 v{vY}, 528, v{vX}")
    e(f"v_lshrrev_b32 v{vT}, 4, v{vLANE}")
    e(f"v_lshl_add_u32 v{vY}, v{vT}, 7, v{vY}")
    e(f"v_add_u32 v{vY}, s{sLDSB}, v{vY}")
    e("s_waitcnt vmcnt(0)")
    for G, sg in ((0, sG0), (1, sG1)):
        e(f"s_cmp_eq_u32 s{sg}, 0")
        e(f"s_cbranch_scc1 L_skipw{G}")
        for ee in range(8):
            e(f"ds_write_b128 v{vY}, v[{vO+G*32+4*ee}:{vO+G*32+4*ee+3}] offset:{G*16*528+ee*16}")
        lab(f"L_skipw{G}")
    e(f"s_cmp_lg_u32 s{sW}, {NW}")
    e("s_cbranch_scc1 L_nonon2")
    e(f"v_readfirstlane_b32 s{sT}, v{vNON}")
    e(f"v_mov_b32 v{vS}, {PSL+32}")
    e(f"s_cmp_eq_u32 s{sT}, 0")
    e(f"s_cselect_b32 s{sT}, s{sCAND}, s{sT}")
    e(f"v_mov_b32 v{vS+1}, s{sT}")
    e(f"ds_write_b32 v{vS}, v{vS+1}")
    lab("L_nonon2")
    c("reader addresses (before the barrier)")
    vR = vT
    e(f"s_lshl_b32 s{sT}, s{sW}, 2")
    e(f"v_add_u32 v{vR}, s{sT}, v{vR}")
    e(f"v_lshlrev_b32 v{vY}, 3, v{vR}")
    e(f"v_add_u32 v{vY}, {ML}, v{vY}")
    e(f"v_mul_u32_u24 v{vT2}, 528, v{vR}")
    e(f"v_lshl_add_u32 v{vT2}, v{vX}, 5, v{vT2}")
    e(f"v_add_u32 v{vMC}, {4*RS}, v{vT2}")
    e(f"s_mov_b32 s{sR1}, s30")
    e(f"s_mov_b32 s{sR1+1}, s31")
    e(f"s_mov_b32 s{sR1+2}, {16<<20}")
    e(f"s_mov_b32 s{sR2}, s26")
    e(f"s_mov_b32 s{sR2+1}, s27")
    e(f"s_lshl_b32 s{sT}, s{sH}, 9")
    e(f"s_add_u32 s{sT}, s{sT}, s{sW}")
    e(f"s_lshl_b32 s{sLO}, s{sT}, 12")
    vOA = vCT; vACC2 = vKF
    e(f"v_lshrrev_b32 v{vOA}, 4, v{vLANE}")
    e(f"v_lshlrev_b32 v{vOA}, 8, v{vOA}")
    e(f"v_bfe_u32 v{vCT+1}, v{vLANE}, 2, 2")
    e(f"v_lshl_add_u32 v{vOA}, v{vCT+1}, 6, v{vOA}")
    e(f"v_and_b32 v{vCT+1}, 3, v{vLANE}")
    e(f"v_lshl_add_u32 v{vOA}, v{vCT+1}, 2, v{vOA}")
    e(f"s_lshl_b32 s{sINFO}, s{sW}, 13")
    e(f"s_lshl_b32 s{sT3}, s{sH}, 10")
    e(f"s_add_u32 s{sINFO}, s{sINFO}, s{sT3}")
    c("ticket operand: byte counters, 8 per head at d_debug + 16h")
    vTK = vP
    e(f"s_lshl_b32 s{sT}, s{sH}, 4")
    e(f"v_mov_b32 v{vREL}, s{sT}")
    e(f"s_lshl_b32 s{sHI}, s{sW}, 3")
    e(f"s_lshl_b64 s[{sT2}:{sT2+1}], 1, s{sHI}")
    e(f"s_cmp_lt_u32 s{sU0}, s{sSH}")
    e(f"s_cselect_b32 s{sG0}, 1, 0")
    e(f"s_cselect_b32 s{sT2}, 0x01010101, s{sT2}")
    e(f"s_cselect_b32 s{sT2+1}, 0x01010101, s{sT2+1}")
    e(f"s_cselect_b32 s{sG1}, s{sW}, 0")
    e(f"v_mov_b32 v{vTK}, s{sT2}")
    e(f"v_mov_b32 v{vTK+1}, s{sT2+1}")
    e(f"v_mov_b32 v{vS}, {PSL+32}")
    e(f"s_bitcmp1_b64 s[{sCM}:{sCM+1}], s{sS}")
    e(f"s_cselect_b32 s{sSEG}, 1, 0")
    e(f"s_bitset0_b64 s[{sCM}:{sCM+1}], s{sS}")
    vG0 = vQ
    sGO = sOFF
    def goffs():
        e(f"s_bcnt1_i32_b64 s{sN}, s[{sCM}:{sCM+1}]")
        e(f"s_min_u32 s{sN}, s{sN}, {NB}")
        for i in range(NB):
            e(f"s_ff1_i32_b64 s{sT}, s[{sCM}:{sCM+1}]")
            e(f"s_bitset0_b64 s[{sCM}:{sCM+1}], s{sT}")
            e(f"s_lshl_b32 s{sT}, s{sT}, 15")
            e(f"s_add_u32 s{sGO+NB-1-i}, s{sT}, s{sLO}")
    goffs()
    e(f"s_sub_u32 s{sEXP}, s{sEXP}, 1")
    e(f"s_lshl_b32 s{sT0}, s{sS}, 15")
    e(f"s_add_u32 s{sT0}, s{sT0}, s{sLO}")
    e("s_waitcnt lgkmcnt(0)")
    e("s_barrier")
    e(f"s_cmp_eq_u32 s{sSEG}, 0")
    e("s_cbranch_scc1 L_end")
    e(f"s_cmp_lg_u32 s{sG1}, 0")
    e("s_cbranch_scc1 L_notk")
    e(f"s_mov_b64 exec, 1")
    e(f"global_atomic_add_x2 v[{vTK}:{vTK+1}], v{vREL}, v[{vTK}:{vTK+1}], s[28:29] sc0 sc1")
    e(f"s_mov_b64 exec, -1")
    lab("L_notk")
    stamp(8)
    vML = vKF
    vOO = vO
    e(f"ds_read_b32 v{vS+1}, v{vS}")
    for ws in range(8):
        e(f"ds_read_b64 v[{vML+2*ws}:{vML+2*ws+1}], v{vY} offset:{ws*256}")
    for ws in range(8):
        va = vT2 if ws < 4 else vMC
        off = (ws & 3) * RS
        e(f"ds_read_b128 v[{vOO+8*ws}:{vOO+8*ws+3}], v{va} offset:{off}")
        e(f"ds_read_b128 v[{vOO+8*ws+4}:{vOO+8*ws+7}], v{va} offset:{off+16}")
        if ws == 2: e("s_waitcnt lgkmcnt(6)")
    vACC = vVS
    vPB = vVT
    gmap = [0, 1, 2, 4, 5, 6, 8, 9]
    vMM, vLL, vW = vS + 2, vS + 3, vLS
    e(f"v_max3_f32 v{vMM}, v{vML}, v{vML+2}, v{vML+4}")
    e(f"v_max3_f32 v{vMM}, v{vMM}, v{vML+6}, v{vML+8}")
    e(f"v_max3_f32 v{vMM}, v{vMM}, v{vML+10}, v{vML+12}")
    e(f"v_max_f32 v{vMM}, v{vMM}, v{vML+14}")
    e(f"v_mul_f32 v{vMM}, s{sC}, v{vMM}")
    for ws in range(8):
        e(f"v_fma_f32 v{vML+2*ws}, v{vML+2*ws}, s{sC}, -v{vMM}")
    for ws in range(8):
        e(f"v_exp_f32 v{vML+2*ws}, v{vML+2*ws}")
    e(f"v_readfirstlane_b32 s{sNON}, v{vS+1}")
    e(f"v_lshlrev_b32 v{vX}, 4, v{vLANE}")
    e(f"v_mul_f32 v{vLL}, v{vML}, v{vML+1}")
    for ws in range(1, 8):
        e(f"v_fmac_f32 v{vLL}, v{vML+2*ws}, v{vML+2*ws+1}")
    e(f"v_mov_b32 v{vPB+3}, v{vS+1}")
    e(f"v_max_f32 v{vAL}, 0x{f2u(1e-30):08x}, v{vLL}")
    e(f"v_log_f32 v{vLL}, v{vAL}")
    e(f"v_rcp_f32 v{vAL}, v{vAL}")
    e(f"v_mov_b32 v{vPB+7}, v{vS+1}")
    e(f"v_mov_b32 v{vPB+11}, v{vS+1}")
    e(f"v_add_f32 v{vPB+10}, v{vMM}, v{vLL}")
    for ws in range(8):
        e(f"v_mul_f32 v{vML+2*ws}, v{vML+2*ws}, v{vAL}")
    e("s_waitcnt lgkmcnt(0)")
    for i in range(4):
        e(f"v_pk_mul_f32 v[{vACC+2*i}:{vACC+2*i+1}], v[{vOO+2*i}:{vOO+2*i+1}], v[{vML}:{vML+1}] op_sel_hi:[1,0]")
    for ws in range(1, 7):
        for i in range(4):
            e(f"v_pk_fma_f32 v[{vACC+2*i}:{vACC+2*i+1}], v[{vOO+8*ws+2*i}:{vOO+8*ws+2*i+1}], v[{vML+2*ws}:{vML+2*ws+1}], v[{vACC+2*i}:{vACC+2*i+1}] op_sel_hi:[1,0,1]")
    for i in range(8):
        e(f"v_fma_f32 v{vPB+gmap[i]}, v{vOO+56+i}, v{vML+14}, v{vACC+i}")
    stamp(9)
    def publish():
        for g in range(3):
            e(f"buffer_store_dwordx4 v[{vPB+4*g}:{vPB+4*g+3}], v{vX}, s[{sR1}:{sR1+3}], s{sT0} offen offset:{1024*g} {hs}")
    e(f"s_cmp_lg_u32 s{sG0}, 0")
    e("s_cbranch_scc1 L_multi")
    e("s_waitcnt vmcnt(0)")
    lab("L_havetk")
    e(f"v_readfirstlane_b32 s{sT2}, v{vTK}")
    e(f"v_readfirstlane_b32 s{sT2+1}, v{vTK+1}")
    e(f"v_mov_b32 v{vW}, 1.0")
    e(f"s_lshr_b64 s[{sT2}:{sT2+1}], s[{sT2}:{sT2+1}], s{sHI}")
    e(f"s_and_b32 s{sT}, s{sT2}, 0xff")
    e(f"s_cmp_eq_u32 s{sT}, s{sEXP}")
    e("s_cbranch_scc0 L_publish")
    e(f"s_cmp_eq_u32 s{sN}, 0")
    e("s_cbranch_scc1 L_final")
    c("last arriver: gather other partials (validated by tag); slots NB-N..NB-1 are live")
    def ladder(tag):
        def rec(lo, hi):
            if lo == hi:
                e(f"s_branch {tag}_{NB-lo}")
                return
            mid = (lo + hi + 1) // 2
            l = f"{tag}_t{lo}_{hi}"
            e(f"s_cmp_ge_u32 s{sN}, {mid}")
            if mid == hi:
                e(f"s_cbranch_scc1 {tag}_{NB-hi}")
                rec(lo, mid - 1)
            else:
                e(f"s_cbranch_scc1 {l}")
                rec(lo, mid - 1)
                lab(l)
                rec(mid, hi)
        rec(1, NB)
    lab("L_gather")
    stamp(11)
    ladder("L_ga")
    for j in range(NB):
        b0 = vG0 + j * 12
        lab(f"L_ga_{j}")
        e(f"buffer_load_dwordx4 v[{b0+8}:{b0+11}], v{vX}, s[{sR1}:{sR1+3}], s{sGO+j} offen offset:2048 {hl}")
    ladder("L_gb")
    for j in range(NB):
        b0 = vG0 + j * 12
        lab(f"L_gb_{j}")
        for g in range(2):
            e(f"buffer_load_dwordx4 v[{b0+4*g}:{b0+4*g+3}], v{vX}, s[{sR1}:{sR1+3}], s{sGO+j} offen offset:{1024*g} {hl}")
    vTmin, vTmax = vT, vT2
    vW2 = vLS + 1
    e(f"v_mov_b32 v{vMN}, v{vPB+10}")
    e(f"v_mov_b32 v{vTmin}, s{sNON}")
    e(f"v_mov_b32 v{vTmax}, s{sNON}")
    ladder("L_gc")
    for j in range(NB):
        b0 = vG0 + j * 12
        lab(f"L_gc_{j}")
        c("entry j: all lse granules landed when <= 2*(NB-j) loads remain; later entries are no-ops") if j == 0 else None
        e(f"s_waitcnt vmcnt({2*(NB-j)})")
        e(f"s_branch L_gd_{j}")
    for j in range(NB):
        b0 = vG0 + j * 12
        lab(f"L_gd_{j}")
        e(f"v_max_f32 v{vMN}, v{vMN}, v{b0+10}")
        e(f"v_min_u32 v{vTmin}, v{vTmin}, v{b0+11}")
        e(f"v_max_u32 v{vTmax}, v{vTmax}, v{b0+11}")
    stamp(12)
    e(f"v_sub_f32 v{vAL}, v{vPB+10}, v{vMN}")
    e(f"v_exp_f32 v{vAL}, v{vAL}")
    e("s_nop 0")
    for i in range(8):
        e(f"v_mul_f32 v{vACC2+i}, v{vAL}, v{vPB+gmap[i]}")
    e(f"v_mul_f32 v{vW2}, v{vAL}, v{vW}")
    ladder("L_ge")
    for j in range(NB):
        b0 = vG0 + j * 12
        lab(f"L_ge_{j}")
        e(f"v_sub_f32 v{b0+10}, v{b0+10}, v{vMN}")
        e(f"v_exp_f32 v{b0+10}, v{b0+10}")
        e(f"s_waitcnt vmcnt({2*(NB-1-j)})")
        e(f"v_min3_u32 v{vTmin}, v{vTmin}, v{b0+3}, v{b0+7}")
        e(f"v_max3_u32 v{vTmax}, v{vTmax}, v{b0+3}, v{b0+7}")
        e(f"v_add_f32 v{vW2}, v{vW2}, v{b0+10}")
        e(f"v_pk_fma_f32 v[{vACC2}:{vACC2+1}], v[{b0}:{b0+1}], v[{b0+10}:{b0+11}], v[{vACC2}:{vACC2+1}] op_sel_hi:[1,0,1]")
        e(f"v_fmac_f32 v{vACC2+2}, v{b0+10}, v{b0+2}")
        e(f"v_fmac_f32 v{vACC2+3}, v{b0+10}, v{b0+4}")
        e(f"v_fmac_f32 v{vACC2+4}, v{b0+10}, v{b0+5}")
        e(f"v_fmac_f32 v{vACC2+5}, v{b0+10}, v{b0+6}")
        e(f"v_pk_fma_f32 v[{vACC2+6}:{vACC2+7}], v[{b0+8}:{b0+9}], v[{b0+10}:{b0+11}], v[{vACC2+6}:{vACC2+7}] op_sel_hi:[1,0,1]")
    e(f"v_cmp_ne_u32 vcc, v{vTmin}, v{vTmax}")
    e(f"v_rcp_f32 v{vAL}, v{vW2}")
    e(f"s_cmp_lg_u64 s[{sCM}:{sCM+1}], 0")
    e("s_cbranch_vccnz L_gather")
    e("s_cbranch_scc1 L_gather2")
    lab("L_fin2")
    for i in range(4):
        e(f"v_pk_mul_f32 v[{vACC2+2*i}:{vACC2+2*i+1}], v[{vACC2+2*i}:{vACC2+2*i+1}], v[{vAL}:{vAL+1}] op_sel_hi:[1,0]")
    for r in range(4):
        e(f"v_cvt_pk_bf16_f32 v{vACC2+r}, v{vACC2+r}, v{vACC2+4+r}")
    for r in range(4):
        e(f"buffer_store_dword v{vACC2+r}, v{vOA}, s[{sR2}:{sR2+3}], s{sINFO} offen offset:{16*r}")
    stamp(13)
    if stamps: e("s_waitcnt vmcnt(0)")
    stamp(14)
    lab("L_end")
    stampflush()
    lab("L_end2")
    e("s_endpgm")
    c("---- side paths")
    lab("L_publish")
    e(f"s_cmp_lg_u32 s{sG0}, 0")
    e("s_cbranch_scc1 L_end")
    publish()
    stamp(10)
    e("s_branch L_end")
    lab("L_final")
    for i in range(8):
        e(f"v_mov_b32 v{vACC2+i}, v{vPB+gmap[i]}")
    e(f"v_mov_b32 v{vAL}, 1.0")
    e("s_branch L_fin2")
    lab("L_multi")
    c("wave 0 took the tickets of all 8 batches: share them through LDS")
    publish()
    e(f"v_mov_b32 v{vS}, {PSL+40}")
    e(f"s_cmp_lg_u32 s{sW}, 0")
    e("s_cbranch_scc1 L_multi2")
    e("s_waitcnt vmcnt(3)")
    e("s_mov_b64 exec, 1")
    e(f"ds_write_b64 v{vS}, v[{vTK}:{vTK+1}]")
    e("s_mov_b64 exec, -1")
    e("s_waitcnt lgkmcnt(0)")
    lab("L_multi2")
    e("s_barrier")
    e(f"ds_read_b64 v[{vTK}:{vTK+1}], v{vS}")
    e("s_waitcnt lgkmcnt(0)")
    e("s_branch L_havetk")
    lab("L_gather2")
    for i in range(8):
        e(f"v_mov_b32 v{vPB+gmap[i]}, v{vACC2+i}")
    e(f"v_mov_b32 v{vPB+10}, v{vMN}")
    e(f"v_mov_b32 v{vW}, v{vW2}")
    goffs()
    e("s_branch L_gather")
    if NSPEC:
        lab("L_mispec")
        e("s_waitcnt vmcnt(0)")
        for k in range(NSPEC):
            e(f"s_add_u32 m0, s{sLDSB}, {k*4096}")
            e("s_nop 0")
            issueK(k, sRL + k)
            issueV(k, sRL + k)
        e("s_branch L_specok")
    lab("L_zq")
    c("ctx<=0: reference softmax is uniform over all positions -> zero those Q rows")
    for b in range(8):
        e(f"s_bitcmp1_b32 s{sZQ}, {b}")
        e(f"s_cbranch_scc0 L_zq{b}")
        e(f"s_lshl_b64 exec, s[{sPAT}:{sPAT+1}], {4*(b&3)}")
        for i in range(16):
            e(f"v_mov_b32 v{vQ+(b>>2)*16+i}, 0")
        lab(f"L_zq{b}")
    e("s_mov_b64 exec, -1")
    e("s_branch L_noz")
    o.append('.section .rodata,"a"')
    o.append(".p2align 6")
    o.append(f".amdhsa_kernel {NAME}_kernel")
    o.append(f"  .amdhsa_next_free_vgpr {NV}")
    o.append("  .amdhsa_next_free_sgpr 102")
    o.append(f"  .amdhsa_accum_offset {(NV+3)//4*4}")
    o.append("  .amdhsa_group_segment_fixed_size 0")
    o.append("  .amdhsa_kernarg_size 64")
    o.append("  .amdhsa_user_sgpr_count 2")
    o.append("  .amdhsa_user_sgpr_kernarg_segment_ptr 1")
    o.append("  .amdhsa_system_sgpr_workgroup_id_x 1")
    o.append(".end_amdhsa_kernel")
    return "\n".join(o) + "\n"

if __name__ == "__main__":
    kw = {}
    out = sys.argv[1]
    for a in sys.argv[2:]:
        k, v = a.split("=")
        kw[k] = v if k in ("ldpol", "hs", "hl") else (float(v) if k.startswith("PHI") else int(v))
    open(out, "w").write(gen(**kw))
```

```python
import sys, math, struct
NAME = "standalone__paged_block_table_kv_radixattention__decode"
def f2u(f): return struct.unpack("<I", struct.pack("<f", f))[0]

def gen(D=2, stamps=0, compute=1, ldpol="nt", epilogue=1, NSPEC=1, PHI=0.89, NB=12, TD=0, X3=0, X7=0, HX=1, EB=1, PHI2=0.88, XA=1, ND=1, NW=1, NA=8, op="", CUT=0, TR=1, PR=0, NON=1, GIVE="", DST="", hs="sc0 sc1", hl="sc0 sc1"):
    o = []
    def e(s): o.append("    " + s)
    def lab(s): o.append(s + ":")
    def c(s): o.append("    ; " + s)

    RS = 16896
    ML = 8 * RS
    TAB = ML + 2048
    QB = TAB + 16384
    PSL = QB + 8192
    LDS = PSL + 64
    KVB = 75497472
    CSC = math.log2(math.e) / math.sqrt(128.0)

    ectx = [8192 - ((i + 1) * 2654435761) % 2048 for i in range(8)]
    eP = 256
    enb = [(x + 15) // 16 for x in ectx]
    eS = eP
    eoff = [eS]
    for b in range(8): eoff.append(eoff[-1] + enb[b] - eP)
    ePv = eoff[8] - eS
    eU = eoff[8]

    sW, sH, sS = 3, 4, 5
    sK, sKD, sN = 6, 7, 8
    sP, sSH, sNSL, sU0, sU1 = 9, 10, 11, 12, 13
    sC = 14
    sLDSB = 15
    sCTX = 32
    sKR, sVR, sR1, sR2 = 40, 44, 48, 52
    sOFF = 56
    sCB = 65
    sT0, sSEG, sINFO, sOFFN = 73, 74, 75, 76
    sPLO, sPHI = 77, 78
    sT = 79
    sMASK = 80
    sPAT = 82
    sC0 = 84
    sCM, sLO, sHI = 92, 94, 95
    sEXP = 17
    sT2 = 96
    sG0, sG1 = 98, 99
    sT3 = 100
    sST = 101
    sZQ = 16
    sSP = 22
    vLANE = 1
    vKD = 2; vVO = 6; vKA = 8
    vUOFF, vINFO = 12, 13
    vCT = 14; vNINF = 16; vM = 17; vLS = 19
    vT, vAL, vT2 = 21, 22, 24
    vMC, vREL, vMN = 25, 26, 27
    vP = 28; vX, vY = 30, 31
    vS = 32; vKF = 36; vVT = 52; vQ = 68; vO = 100; vVS = 164
    NV = max(vVS + 16 * D, vQ + NB * 12)
    vNON = 0
    sCAND = 18
    sNON = 19
    vE0 = (NV + 1) & ~1
    vETK, vEML, vEOW, vERM, vERO0, vERO1, vEOA, vETA, vEX16, vENA = vE0, vE0+2, vE0+3, vE0+4, vE0+5, vE0+6, vE0+7, vE0+8, vE0+9, vE0+10
    NV = vE0 + 11
    sOWN, sOUT, sMUL, sNTK, sRD, sGN = 32, 33, 34, 35, 36, 37
    vSX, vSY = NV, NV + 1
    if stamps: NV += 2

    def stamp(idx):
        if not stamps: return
        e(f"s_memrealtime s[{sT2}:{sT2+1}]")
        e(f"s_waitcnt lgkmcnt(0)")
        e(f"v_writelane_b32 v{vSX}, s{sT2}, {idx}")
    def stampflush():
        if not stamps: return
        e(f"s_lshl_b32 s{sST}, s2, 3")
        e(f"s_add_u32 s{sST}, s{sST}, s{sW}")
        e(f"s_lshl_b32 s{sST}, s{sST}, 6")
        e(f"s_add_u32 s{sST}, s{sST}, {301989888 - (1<<20)}")
        e(f"s_mov_b64 exec, 0xffff")
        e(f"v_lshlrev_b32 v{vSY}, 2, v{vLANE}")
        e(f"v_add_u32 v{vSY}, s{sST}, v{vSY}")
        e(f"global_store_dword v{vSY}, v{vSX}, s[30:31]")

    def plan_slices(S, U, a):
        a0, a1, a2, a3, a4, a5, vA, vE = [a + i for i in range(8)]
        e(f"v_cvt_f32_u32 v{a0}, {U}")
        e(f"v_cvt_f32_u32 v{a1}, {S}")
        e(f"v_cvt_f32_u32 v{a2}, s{sNSL}")
        e(f"v_rcp_f32 v{a3}, v{a0}")
        e(f"v_mul_f32 v{a1}, 0x{f2u(1.0/PHI):08x}, v{a1}")
        e(f"v_mul_f32 v{a1}, v{a1}, v{a2}")
        e(f"v_mul_f32 v{a1}, v{a1}, v{a3}")
        e(f"v_ceil_f32 v{a1}, v{a1}")
        e(f"v_min_f32 v{a1}, v{a1}, v{a2}")
        e(f"v_mov_b32 v{a3}, 0x{f2u(PHI-1.0):08x}")
        if PHI2 != 1.0:
            e(f"v_subrev_f32 v{a4}, 0x{f2u(32.0):08x}, v{a2}")
            e(f"v_max_f32 v{a4}, 0, v{a4}")
            e(f"v_mul_f32 v{a4}, 0x{f2u(PHI2-1.0):08x}, v{a4}")
            e(f"v_add_f32 v{a2}, v{a2}, v{a4}")
        e(f"v_fma_f32 v{a2}, v{a1}, v{a3}, v{a2}")
        e(f"v_rcp_f32 v{a2}, v{a2}")
        e(f"v_cvt_f32_u32 v{a4}, v{vLANE}")
        e(f"v_mul_f32 v{a2}, v{a2}, v{a0}")
        e(f"v_add_f32 v{a5}, 1.0, v{a4}")
        for x, d in ((a4, vA), (a5, vE)):
            e(f"v_min_f32 v{d}, v{x}, v{a1}")
            e(f"v_fma_f32 v{d}, v{d}, v{a3}, v{x}")
            if PHI2 != 1.0:
                e(f"v_subrev_f32 v{x}, 0x{f2u(32.0):08x}, v{x}")
                e(f"v_max_f32 v{x}, 0, v{x}")
                e(f"v_mul_f32 v{x}, 0x{f2u(PHI2-1.0):08x}, v{x}")
                e(f"v_add_f32 v{d}, v{d}, v{x}")
            e(f"v_fma_f32 v{d}, v{d}, v{a2}, 0.5")
            e(f"v_cvt_u32_f32 v{d}, v{d}")
        e(f"v_add_u32 v{a4}, 1, v{vLANE}")
        e(f"v_mov_b32 v{a0}, {U}")
        e(f"v_cmp_le_u32 vcc, s{sNSL}, v{a4}")
        e(f"v_min_u32 v{vA}, v{vA}, v{a0}")
        e(f"v_min_u32 v{vE}, v{vE}, v{a0}")
        e(f"v_cndmask_b32 v{vE}, v{vE}, v{a0}, vcc")
        e(f"v_cmp_le_u32 vcc, s{sNSL}, v{vLANE}")
        e("s_nop 1")
        e(f"v_cndmask_b32 v{vA}, v{vA}, v{a0}, vcc")

    def issueV(d, soff):
        for i in range(4):
            e(f"buffer_load_dwordx4 v[{vVS+d*16+i*4}:{vVS+d*16+i*4+3}], v{vVO+(i>>1)}, s[{sVR}:{sVR+3}], s{soff} offen offset:{(i&1)*2048} {ldpol}")
    def issueK(d, soff):
        for i in range(4):
            e(f"buffer_load_dwordx4 v{vKD+i}, s[{sKR}:{sKR+3}], s{soff} offen offset:{i*1024} {ldpol} lds")

    hdr = open(f"cdna_kernels/{NAME}.s.ref").read().split("\n")
    for ln in hdr:
        if ln.startswith("; @launch"): break
        o.append(ln)
    o.append(f"; @launch grid=(256,1,1) block=(512,1,1) lds={LDS}")
    o.append('.amdgcn_target "amdgcn-amd-amdhsa--gfx950"')
    o.append(".text")
    o.append(f".globl {NAME}_kernel")
    o.append(".p2align 8")
    o.append(f".type {NAME}_kernel,@function")
    lab(f"{NAME}_kernel")
    e("s_cmp_ge_u32 s2, 256")
    e("s_cbranch_scc1 L_end2")
    if stamps: e(f"v_mov_b32 v{vSX}, 0")
    stamp(0)
    e("s_load_dwordx16 s[16:31], s[0:1], 0")
    if PR in (1, 3): e("s_setprio 3")
    e(f"v_lshrrev_b32 v{vT}, 6, v0")
    e(f"v_and_b32 v{vLANE}, 63, v0")
    e(f"v_readfirstlane_b32 s{sW}, v{vT}")
    e(f"s_and_b32 s{sH}, s2, 7")
    if HX: e(f"s_xor_b32 s{sH}, s{sH}, {HX}")
    e(f"s_lshr_b32 s{sS}, s2, 3")
    if GIVE:
        give = [int(ch) for ch in GIVE]; dst = [int(ch) for ch in DST]
        tot = [0, 0]; base = [0]*8
        for cx in range(8):
            base[cx] = tot[dst[cx]]; tot[dst[cx]] += give[cx]
        nsl = [32 - give[cx] for cx in range(8)]
        nsl[0] = 32 + tot[0]; nsl[4] = 32 + tot[1]
        t1 = sum((nsl[cx] - 28) << (4*cx) for cx in range(8))
        t2 = sum(((base[cx] << 1) | dst[cx]) << (4*cx) for cx in range(8))
        e(f"s_and_b32 s{sT}, s2, 7")
        e(f"s_lshl_b32 s{sT}, s{sT}, 2")
        e(f"s_lshr_b32 s{sNSL}, 0x{t1:08x}, s{sT}")
        e(f"s_and_b32 s{sNSL}, s{sNSL}, 15")
        e(f"s_add_u32 s{sNSL}, s{sNSL}, 28")
        e(f"s_cmp_ge_u32 s{sS}, s{sNSL}")
        e(f"s_cbranch_scc0 L_map2")
        e(f"s_lshr_b32 s{sT}, 0x{t2:08x}, s{sT}")
        e(f"s_sub_u32 s{sS}, s{sS}, s{sNSL}")
        e(f"s_bfe_u32 s{sT3}, s{sT}, 0x30001")
        e(f"s_add_u32 s{sS}, s{sS}, s{sT3}")
        e(f"s_add_u32 s{sS}, s{sS}, 32")
        e(f"s_bitcmp1_b32 s{sT}, 0")
        e(f"s_cselect_b32 s{sH}, 5, 1")
        e(f"s_cselect_b32 s{sNSL}, {nsl[4]}, {nsl[0]}")
        lab("L_map2")
    elif XA:
        e(f"s_and_b32 s{sT}, s{sH}, 3")
        e(f"s_cmp_eq_u32 s{sT}, 1")
        e(f"s_cselect_b32 s{sNSL}, 35, 31")
        e(f"s_cmp_ge_u32 s{sS}, s{sNSL}")
        e(f"s_cbranch_scc0 L_map2")
        e(f"s_max_u32 s{sT}, s{sT}, 1")
        e(f"s_add_u32 s{sS}, s{sT}, 31")
        e(f"s_and_b32 s{sH}, s{sH}, 4")
        e(f"s_or_b32 s{sH}, s{sH}, 1")
        e(f"s_mov_b32 s{sNSL}, 35")
        lab("L_map2")
    else:
        e(f"s_mov_b32 s{sNSL}, 32")
    for hh, X in ((3, X3), (7, X7)):
        if not X: continue
        e(f"s_cmp_eq_u32 s{sH}, {hh}")
        e(f"s_cselect_b32 s{sNSL}, {32-X}, s{sNSL}")
    if X3 or X7:
        e(f"s_cmp_ge_u32 s{sS}, s{sNSL}")
        e(f"s_cbranch_scc0 L_map")
        e(f"s_sub_u32 s{sS}, s{sS}, s{sNSL}")
        e(f"s_add_u32 s{sS}, s{sS}, 32")
        e(f"s_sub_u32 s{sH}, s{sH}, 2")
        lab("L_map")
    for hh, X in ((1, X3), (5, X7)):
        if not X: continue
        e(f"s_cmp_eq_u32 s{sH}, {hh}")
        e(f"s_cselect_b32 s{sNSL}, {32+X}, s{sNSL}")
    vRow, vG = vVT, vVT + 1
    t0, t1, t2 = vVT + 2, vVT + 3, vVT + 4
    vQO = vVT + 5
    e(f"v_and_b32 v{vRow}, 15, v{vLANE}")
    e(f"v_lshrrev_b32 v{vG}, 4, v{vLANE}")
    e(f"v_lshlrev_b32 v{vX}, 2, v0")
    e(f"s_lshl_b32 s{sT}, s{sH}, 8")
    e(f"s_mul_i32 s{sLDSB}, s{sW}, {RS}")
    e(f"v_lshlrev_b32 v{vVO}, 13, v{vG}")
    e(f"v_lshl_add_u32 v{vVO}, v{vRow}, 4, v{vVO}")
    e(f"v_add_u32 v{vVO}, s{sT}, v{vVO}")
    e(f"v_add_u32 v{vVO+1}, 0x1000, v{vVO}")
    e(f"v_xor_b32 v{t0}, v{vG}, v{vRow}")
    e(f"v_lshlrev_b32 v{t1}, 11, v{vG}")
    e(f"v_add_u32 v{t1}, s{sT}, v{t1}")
    for i in range(4):
        if i: e(f"v_xor_b32 v{t2}, {4*i}, v{t0}")
        e(f"v_lshl_add_u32 v{vKD+i}, v{t2 if i else t0}, 4, v{t1}")
        if i: e(f"v_add_u32 v{vKD+i}, {i*8192-i*1024}, v{vKD+i}")
    e(f"v_add_u32 v{vY}, 0x1000, v{vX}")
    e(f"v_add_u32 v{vT}, 0x2000, v{vX}")
    e(f"v_add_u32 v{vT2}, 0x3000, v{vX}")
    e(f"s_and_b32 s{sT3}, s{sW}, 3")
    e(f"s_lshl_b32 s{sT3}, s{sT3}, 2")
    e(f"v_xor_b32 v{vQO}, s{sT3}, v{t0}")
    e(f"v_lshlrev_b32 v{vQO}, 4, v{vQO}")
    e(f"v_lshl_add_u32 v{vQO}, v{vG}, 8, v{vQO}")
    e(f"s_lshl_b32 s{sLO}, s{sW}, 13")
    e(f"s_lshl_b32 s{sT3}, s{sH}, 10")
    e(f"s_add_u32 s{sLO}, s{sLO}, s{sT3}")
    e(f"s_lshl_b32 s{sHI}, s{sW}, 10")
    e(f"s_add_u32 s{sHI}, s{sHI}, {QB}")
    for r, n in ((sR1, 16384), (sR2, 65536), (sKR, KVB), (sVR, KVB)):
        e(f"s_mov_b32 s{r+2}, {n}")
        e(f"s_mov_b32 s{r+3}, 0x00020000")
    if NSPEC:
        c("predicted first units (prefetch hint only)")
        plan_slices(str(eS), str(eU), vKF)
        e("s_nop 0")
        e(f"v_readlane_b32 s{sT}, v{vKF+6}, s{sS}")
        e(f"s_add_u32 s{sT}, s{sT}, s{sW}")
        for k in range(NSPEC):
            if k: e(f"s_add_u32 s{sT}, s{sT}, {NA}")
            e(f"s_mov_b32 s{sT3}, 0")
            for b in range(1, 8):
                e(f"s_cmp_ge_u32 s{sT}, {eoff[b]}")
                e(f"s_cselect_b32 s{sT3}, {eP + 256*b - eoff[b]}, s{sT3}")
            e(f"s_add_u32 s{sT3}, s{sT3}, s{sT}")
            e(f"s_lshl_b32 s{sC0+k}, s{sT3}, 15")
            if NA < 8:
                e(f"s_cmp_ge_u32 s{sW}, {NA}")
                e(f"s_cselect_b32 s{sC0+k}, 0x80000000, s{sC0+k}")
    e(f"s_mov_b32 m0, s{sHI}")
    e("s_waitcnt lgkmcnt(0)")
    stamp(1)
    e(f"s_mov_b32 s{sR1}, s22")
    e(f"s_mov_b32 s{sR1+1}, s23")
    e(f"s_load_dwordx8 s[{sCTX}:{sCTX+7}], s[24:25], 0")
    vTB = vKF
    for b in range(8):
        va = [vX, vY, vT, vT2][b >> 1]
        e(f"buffer_load_dword v{vTB+b}, v{va}, s[{sR1}:{sR1+3}], 0 offen offset:{(b&1)*2048}")
    e(f"s_mov_b32 s{sR2}, s16")
    e(f"s_mov_b32 s{sR2+1}, s17")
    e(f"s_mov_b32 s{sKR}, s18")
    e(f"s_mov_b32 s{sKR+1}, s19")
    e(f"buffer_load_dwordx4 v{vQO}, s[{sR2}:{sR2+3}], s{sLO} offen lds")
    e(f"s_mov_b32 s{sVR}, s20")
    e(f"s_mov_b32 s{sVR+1}, s21")
    if EB: e("s_barrier")
    for k in range(NSPEC):
        e(f"s_add_u32 m0, s{sLDSB}, {k*4096}")
        e("s_nop 0")
        issueK(k, sC0 + k)
        issueV(k, sC0 + k)
    c("constants")
    e(f"s_mov_b32 s{sC}, 0x{f2u(CSC):08x}")
    e(f"s_mov_b32 s{sPLO}, 0x05040100")
    e(f"s_mov_b32 s{sPHI}, 0x07060302")
    e(f"s_mov_b32 s{sPAT}, 0x000F000F")
    e(f"s_mov_b32 s{sPAT+1}, 0x000F000F")
    e(f"v_lshlrev_b32 v{t1}, 8, v{vRow}")
    e(f"v_add_u32 v{t1}, s{sLDSB}, v{t1}")
    for s in range(4):
        if s: e(f"v_xor_b32 v{t2}, {4*s}, v{t0}")
        e(f"v_lshl_add_u32 v{vKA+s}, v{t2 if s else t0}, 4, v{t1}")
    e(f"v_mov_b32 v{vNINF}, 0xff800000")
    e(f"v_mov_b32 v{vM}, 0xf1800000")
    e(f"v_mov_b32 v{vM+1}, 0xf1800000")
    e(f"v_mov_b32 v{vLS}, 0")
    e(f"v_mov_b32 v{vLS+1}, 0")
    for i in range(64):
        e(f"v_mov_b32 v{vO+i}, 0")
    e(f"v_add_u32 v{vX}, {TAB}, v{vX}")
    c("ctx scalars")
    e("s_waitcnt lgkmcnt(0)")
    e(f"s_mov_b32 s{sSH}, 0")
    e(f"s_mov_b32 s{sZQ}, 0")
    for b in range(8):
        r = sCTX + b
        e(f"s_cmp_lt_i32 s{r}, 1")
        e(f"s_cselect_b32 s{r}, 8192, s{r}")
        e(f"s_cselect_b32 s{sT}, {1<<b}, 0")
        e(f"s_or_b32 s{sZQ}, s{sZQ}, s{sT}")
        e(f"s_min_i32 s{r}, s{r}, 8192")
        e(f"s_add_u32 s{sCB+b}, s{r}, 15")
        e(f"s_lshr_b32 s{sCB+b}, s{sCB+b}, 4")
        e(f"s_max_u32 s{sSH}, s{sSH}, s{sCB+b}")
    for b in range(4):
        e(f"s_lshl_b64 exec, s[{sPAT}:{sPAT+1}], {4*b}")
        e(f"v_mov_b32 v{vCT}, s{sCTX+b}")
        e(f"v_mov_b32 v{vCT+1}, s{sCTX+4+b}")
    e("s_mov_b64 exec, -1")
    e(f"v_lshlrev_b32 v{t1}, 2, v{vG}")
    e(f"v_sub_u32 v{vCT}, v{vCT}, v{t1}")
    e(f"v_sub_u32 v{vCT+1}, v{vCT+1}, v{t1}")
    e(f"s_lshl_b32 s{sT}, s{sW}, 2")
    e(f"s_add_u32 s{sT}, s{sT}, {PSL}")
    e(f"v_mov_b32 v{vY}, s{sT}")
    e(f"s_lshl_b32 s{sT}, s{sW}, 6")
    c("table arrived?")
    e(f"s_waitcnt vmcnt({1+8*NSPEC})")
    stamp(2)
    for b in range(1, 8):
        e(f"v_xor_b32 v{vTB+8+b}, v{vTB}, v{vTB+b}")
    e(f"v_or3_b32 v{vTB+9}, v{vTB+9}, v{vTB+10}, v{vTB+11}")
    e(f"v_or3_b32 v{vTB+12}, v{vTB+12}, v{vTB+13}, v{vTB+14}")
    e(f"v_or3_b32 v{vTB+9}, v{vTB+9}, v{vTB+12}, v{vTB+15}")
    e(f"v_cmp_ne_u32 vcc, 0, v{vTB+9}")
    for b in range(0, 8, 2):
        e(f"ds_write2st64_b32 v{vX}, v{vTB+b}, v{vTB+b+1} offset0:{b*8} offset1:{(b+1)*8}")
    e(f"s_ff1_i32_b64 s{sP}, vcc")
    e(f"s_add_u32 s{sP}, s{sP}, s{sT}")
    e(f"s_cmp_eq_u64 vcc, 0")
    e(f"s_cselect_b32 s{sP}, 512, s{sP}")
    e(f"v_mov_b32 v{vT}, s{sP}")
    e(f"ds_write_b32 v{vY}, v{vT}")
    e(f"v_mov_b32 v{vY}, {PSL}")
    e(f"s_waitcnt vmcnt({8*NSPEC}) lgkmcnt(0)")
    e("s_barrier")
    stamp(3)
    e(f"ds_read_b128 v[{vKF}:{vKF+3}], v{vY}")
    e(f"ds_read_b128 v[{vKF+4}:{vKF+7}], v{vY} offset:16")
    c("Q fragments from LDS")
    e(f"s_sub_u32 s{sT}, {QB}, s{sLDSB}")
    for s in range(4):
        e(f"v_add_u32 v{vS+s}, s{sT}, v{vKA+s}")
    for G in range(2):
        for s in range(4):
            e(f"ds_read_b128 v[{vQ+G*16+4*s}:{vQ+G*16+4*s+3}], v{vS+s} offset:{G*4096}")
    e("s_waitcnt lgkmcnt(8)")
    e(f"v_min3_u32 v{vKF}, v{vKF}, v{vKF+1}, v{vKF+2}")
    e(f"v_min3_u32 v{vKF+3}, v{vKF+3}, v{vKF+4}, v{vKF+5}")
    e(f"v_min3_u32 v{vKF}, v{vKF}, v{vKF+6}, v{vKF+7}")
    e(f"v_min_u32 v{vKF}, v{vKF}, v{vKF+3}")
    e("s_nop 0")
    e(f"v_readfirstlane_b32 s{sP}, v{vKF}")
    c("plan")
    e(f"s_min_u32 s{sSH}, s{sSH}, s{sP}")
    e(f"s_mov_b32 s{sOFF}, s{sSH}")
    for b in range(8):
        e(f"s_sub_i32 s{sT}, s{sCB+b}, s{sP}")
        e(f"s_max_i32 s{sT}, s{sT}, 0")
        e(f"s_add_u32 s{sOFF+b+1}, s{sOFF+b}, s{sT}")
        e(f"s_sub_i32 s{sCB+b}, s{sP}, s{sOFF+b}")
        if b: e(f"s_addk_i32 s{sCB+b}, {512*b}")
    sU = sOFF + 8
    plan_slices(f"s{sSH}", f"s{sU}", vKF)
    vA, vE = vKF + 6, vKF + 7
    e("s_nop 0")
    e(f"v_readlane_b32 s{sU0}, v{vA}, s{sS}")
    e(f"v_readlane_b32 s{sU1}, v{vE}, s{sS}")
    vU, vCc = vKF, vKF + 1
    e(f"v_mul_u32_u24 v{vU}, {NA}, v{vLANE}")
    e(f"v_mov_b32 v{vCc}, 0")
    e(f"s_add_u32 s{sT}, s{sU0}, s{sW}")
    if NA < 8:
        e(f"s_cmp_ge_u32 s{sW}, {NA}")
        e(f"s_cselect_b32 s{sT}, 0x10000, s{sT}")
    e(f"v_add_u32 v{vU}, s{sT}, v{vU}")
    for b in range(8):
        e(f"v_cmpx_le_u32 vcc, s{sOFF+b}, v{vU}")
        e(f"v_mov_b32 v{vCc}, s{sCB+b}")
    e("s_mov_b64 exec, -1")
    e(f"v_add_u32 v{vCc}, v{vU}, v{vCc}")
    e(f"v_and_b32 v{vCc}, 4095, v{vCc}")
    e(f"v_lshlrev_b32 v{vX}, 2, v{vCc}")
    e(f"v_add_u32 v{vX}, {TAB}, v{vX}")
    e(f"ds_read_b32 v{vY}, v{vX}")
    e(f"v_and_b32 v{vINFO}, 511, v{vCc}")
    e(f"v_lshlrev_b32 v{vINFO}, 4, v{vINFO}")
    e(f"v_lshrrev_b32 v{vT}, 9, v{vCc}")
    e(f"v_cmp_gt_u32 vcc, s{sSH}, v{vU}")
    e(f"v_mov_b32 v{vT2}, 8")
    e(f"v_cmp_gt_u32 s[{sT2}:{sT2+1}], s{sU1}, v{vU}")
    e(f"v_cndmask_b32 v{vT}, v{vT}, v{vT2}, vcc")
    e(f"v_lshl_or_b32 v{vINFO}, v{vT}, 16, v{vINFO}")
    e(f"v_mov_b32 v{vT2}, 0x80000000")
    e(f"s_bcnt1_i32_b64 s{sN}, s[{sT2}:{sT2+1}]")
    e("s_waitcnt lgkmcnt(0)")
    e(f"v_lshlrev_b32 v{vY}, 15, v{vY}")
    e(f"v_cndmask_b32 v{vUOFF}, v{vT2}, v{vY}, s[{sT2}:{sT2+1}]")
    e("s_nop 0")
    sRL = sC0 + 4
    for d in range(D):
        e(f"v_readlane_b32 s{sRL+d}, v{vUOFF}, {d}")
    if NSPEC:
        e("s_nop 0")
        for k in range(NSPEC):
            e(f"s_cmp_lg_u32 s{sRL+k}, s{sC0+k}")
            e("s_cbranch_scc1 L_mispec")
        lab("L_specok")
    else:
        e("s_nop 1")
    for d in range(NSPEC, D):
        e(f"s_add_u32 m0, s{sLDSB}, {d*4096}")
        e("s_nop 0")
        issueK(d, sRL + d)
        issueV(d, sRL + d)
    stamp(4)
    c("off critical path")
    c("launch nonce: workgroup 0 proposes its clock early; everybody reads it late through the scalar path")
    def nonce_req():
        e(f"s_memrealtime s[{sT2}:{sT2+1}]")
        e(f"v_mov_b32 v{vP+1}, 0")
        e(f"v_mov_b32 v{vREL}, 128")
        e("s_waitcnt lgkmcnt(0)")
        e(f"s_or_b32 s{sCAND}, s{sT2}, 1")
        e(f"v_mov_b32 v{vP}, s{sCAND}")
        e("s_mov_b64 exec, 1")
        e(f"global_atomic_cmpswap v{vNON}, v{vREL}, v[{vP}:{vP+1}], s[28:29] sc0 sc1")
        e("s_mov_b64 exec, -1")
    e(f"s_lshl_b32 s{sT}, s2, 3")
    e(f"s_add_u32 s{sT}, s{sT}, s{sW}")
    e(f"s_cmp_lg_u32 s{sT}, {NW}")
    e("s_cbranch_scc1 L_nonon")
    nonce_req()
    lab("L_nonon")
    e(f"s_cmp_eq_u32 s{sZQ}, 0")
    e("s_cbranch_scc0 L_zq")
    lab("L_noz")
    e(f"s_mov_b32 s{sLO}, s{sOFF}")
    e(f"s_mov_b32 s{sHI}, s{sOFF+1}")
    for b in range(1, 8):
        e(f"s_cmp_eq_u32 s{sW}, {b}")
        e(f"s_cselect_b32 s{sLO}, s{sOFF+b}, s{sLO}")
        e(f"s_cselect_b32 s{sHI}, s{sOFF+b+1}, s{sHI}")
    e(f"v_cmp_lt_u32 s[{sC0}:{sC0+1}], v{vA}, v{vE}")
    e(f"v_cmp_gt_u32 s[{sC0+2}:{sC0+3}], s{sSH}, v{vA}")
    e(f"v_cmp_gt_u32 s[{sC0+4}:{sC0+5}], s{sHI}, v{vA}")
    e(f"v_cmp_lt_u32 s[{sC0+6}:{sC0+7}], s{sLO}, v{vE}")
    e(f"s_and_b64 s[{sC0+4}:{sC0+5}], s[{sC0+4}:{sC0+5}], s[{sC0+6}:{sC0+7}]")
    e(f"s_cmp_lt_u32 s{sLO}, s{sHI}")
    e(f"s_cselect_b64 s[{sC0+4}:{sC0+5}], s[{sC0+4}:{sC0+5}], 0")
    e(f"s_or_b64 s[{sC0+2}:{sC0+3}], s[{sC0+2}:{sC0+3}], s[{sC0+4}:{sC0+5}]")
    e(f"s_and_b64 s[{sCM}:{sCM+1}], s[{sC0+2}:{sC0+3}], s[{sC0}:{sC0+1}]")
    e(f"s_bcnt1_i32_b64 s{sEXP}, s[{sCM}:{sCM+1}]")
    for G, sg in ((0, sG0), (1, sG1)):
        e(f"s_max_u32 s{sT}, s{sU0}, s{sOFF+4*G}")
        e(f"s_min_u32 s{sT3}, s{sU1}, s{sOFF+4*G+4}")
        e(f"s_cmp_lt_u32 s{sT}, s{sT3}")
        e(f"s_cselect_b32 s{sg}, 1, 0")
        e(f"s_cmp_lt_u32 s{sU0}, s{sSH}")
        e(f"s_cselect_b32 s{sg}, 1, s{sg}")
    c("epilogue setup (off the critical path)")
    e(f"v_and_b32 v{vX}, 15, v{vLANE}")
    e(f"v_lshrrev_b32 v{vT}, 4, v{vLANE}")
    e(f"s_lshl_b32 s{sT}, s{sW}, 8")
    e(f"s_add_u32 s{sT}, s{sT}, {ML}")
    e(f"v_lshlrev_b32 v{vEML}, 3, v{vX}")
    e(f"v_add_u32 v{vEML}, s{sT}, v{vEML}")
    e(f"v_mul_u32_u24 v{vEOW}, 528, v{vX}")
    e(f"v_lshl_add_u32 v{vEOW}, v{vT}, 7, v{vEOW}")
    e(f"v_add_u32 v{vEOW}, s{sLDSB}, v{vEOW}")
    e(f"v_lshlrev_b32 v{vEOA}, 8, v{vT}")
    e(f"s_lshl_b32 s{sT}, s{sW}, 2")
    e(f"v_add_u32 v{vT}, s{sT}, v{vT}")
    e(f"v_lshlrev_b32 v{vERM}, 3, v{vT}")
    e(f"v_add_u32 v{vERM}, {ML}, v{vERM}")
    e(f"v_mul_u32_u24 v{vERO0}, 528, v{vT}")
    e(f"v_lshl_add_u32 v{vERO0}, v{vX}, 5, v{vERO0}")
    e(f"v_add_u32 v{vERO1}, {4*RS}, v{vERO0}")
    e(f"v_bfe_u32 v{vT}, v{vLANE}, 2, 2")
    e(f"v_lshl_add_u32 v{vEOA}, v{vT}, 6, v{vEOA}")
    e(f"v_and_b32 v{vT}, 3, v{vLANE}")
    e(f"v_lshl_add_u32 v{vEOA}, v{vT}, 2, v{vEOA}")
    e(f"v_lshlrev_b32 v{vEX16}, 4, v{vLANE}")
    e(f"v_mov_b32 v{vENA}, {PSL+32}")
    e(f"s_mov_b32 s{sR1}, s30")
    e(f"s_mov_b32 s{sR1+1}, s31")
    e(f"s_mov_b32 s{sR1+2}, {16<<20}")
    e(f"s_mov_b32 s{sR2}, s26")
    e(f"s_mov_b32 s{sR2+1}, s27")
    e(f"s_lshl_b32 s{sT}, s{sH}, 9")
    e(f"s_add_u32 s{sT}, s{sT}, s{sW}")
    e(f"s_lshl_b32 s{sLO}, s{sT}, 12")
    e(f"s_lshl_b32 s{sOUT}, s{sW}, 13")
    e(f"s_lshl_b32 s{sT3}, s{sH}, 10")
    e(f"s_add_u32 s{sOUT}, s{sOUT}, s{sT3}")
    c("ticket operand: byte counters, 8 per head at d_debug + 16h")
    e(f"s_lshl_b32 s{sT}, s{sH}, 4")
    e(f"v_mov_b32 v{vETA}, s{sT}")
    e(f"s_lshl_b32 s{sHI}, s{sW}, 3")
    e(f"s_lshl_b64 s[{sT2}:{sT2+1}], 1, s{sHI}")
    e(f"s_cmp_lt_u32 s{sU0}, s{sSH}")
    e(f"s_cselect_b32 s{sMUL}, 1, 0")
    e(f"s_cselect_b32 s{sT2}, 0x01010101, s{sT2}")
    e(f"s_cselect_b32 s{sT2+1}, 0x01010101, s{sT2+1}")
    e(f"s_cselect_b32 s{sNTK}, s{sW}, 0")
    e(f"v_mov_b32 v{vETK}, s{sT2}")
    e(f"v_mov_b32 v{vETK+1}, s{sT2+1}")
    e(f"s_bitcmp1_b64 s[{sCM}:{sCM+1}], s{sS}")
    e(f"s_cselect_b32 s{sRD}, 1, 0")
    e(f"s_bitset0_b64 s[{sCM}:{sCM+1}], s{sS}")
    vG0 = vQ
    sGO = sOFF
    def goffs():
        e(f"s_bcnt1_i32_b64 s{sGN}, s[{sCM}:{sCM+1}]")
        e(f"s_min_u32 s{sGN}, s{sGN}, {NB}")
        for i in range(NB):
            e(f"s_ff1_i32_b64 s{sT}, s[{sCM}:{sCM+1}]")
            e(f"s_bitset0_b64 s[{sCM}:{sCM+1}], s{sT}")
            e(f"s_lshl_b32 s{sT}, s{sT}, 15")
            e(f"s_add_u32 s{sGO+NB-1-i}, s{sT}, s{sLO}")
    goffs()
    e(f"s_sub_u32 s{sEXP}, s{sEXP}, 1")
    e(f"s_lshl_b32 s{sOWN}, s{sS}, 15")
    e(f"s_add_u32 s{sOWN}, s{sOWN}, s{sLO}")
    e(f"s_mov_b32 s{sK}, 0")
    e(f"s_mov_b32 s{sKD}, {D}")
    if PR == 2:
        e(f"s_cmp_lt_u32 s{sW}, 4")
        e("s_cbranch_scc1 L_pr2")
        e("s_setprio 1")
        lab("L_pr2")
    stamp(5)
    e(f"s_cmp_eq_u32 s{sN}, 0")
    e("s_cbranch_scc1 L_loopdone")

    def group(G):
        q = vQ + G * 16; O = vO + G * 32; m = vM + G; ls = vLS + G
        for s in range(4):
            cc = "0" if s == 0 else f"v[{vS}:{vS+3}]"
            e(f"v_mfma_f32_16x16x32_bf16 v[{vS}:{vS+3}], v[{vKF+4*s}:{vKF+4*s+3}], v[{q+4*s}:{q+4*s+3}], {cc}")
        e(f"v_subrev_u32 v{vREL}, s{sT0}, v{vCT+G}")
        e(f"v_cndmask_b32 v{vREL}, 0, v{vREL}, s[{sMASK}:{sMASK+1}]")
        for i in range(4):
            e(f"v_cmp_lt_i32 s[{sC0+2*i}:{sC0+2*i+1}], {i}, v{vREL}")
        e("s_nop 1")
        for i in range(4):
            e(f"v_cndmask_b32 v{vS+i}, v{vNINF}, v{vS+i}, s[{sC0+2*i}:{sC0+2*i+1}]")
        e(f"v_max3_f32 v{vT}, v{vS}, v{vS+1}, v{vS+2}")
        e(f"v_max3_f32 v{vT}, v{vT}, v{vS+3}, v{m}")
        e(f"v_mov_b32 v{vT2}, v{vT}")
        e("s_nop 1")
        e(f"v_permlane32_swap_b32 v{vT}, v{vT2}")
        e(f"v_max_f32 v{vT}, v{vT}, v{vT2}")
        e(f"v_mov_b32 v{vT2}, v{vT}")
        e("s_nop 1")
        e(f"v_permlane16_swap_b32 v{vT}, v{vT2}")
        e(f"v_max_f32 v{vMN}, v{vT}, v{vT2}")
        e(f"v_sub_f32 v{vT}, v{m}, v{vMN}")
        e(f"v_mul_f32 v{vMC}, s{sC}, v{vMN}")
        e(f"v_mul_f32 v{vT}, s{sC}, v{vT}")
        e(f"v_exp_f32 v{vAL}, v{vT}")
        for i in range(4):
            e(f"v_fma_f32 v{vS+i}, v{vS+i}, s{sC}, -v{vMC}")
        for i in range(4):
            e(f"v_exp_f32 v{vS+i}, v{vS+i}")
        e(f"v_mov_b32 v{m}, v{vMN}")
        for i in range(16):
            e(f"v_pk_mul_f32 v[{O+2*i}:{O+2*i+1}], v[{O+2*i}:{O+2*i+1}], v[{vAL}:{vAL+1}] op_sel_hi:[1,0]")
        e(f"v_cvt_pk_bf16_f32 v{vP}, v{vS}, v{vS+1}")
        e(f"v_cvt_pk_bf16_f32 v{vP+1}, v{vS+2}, v{vS+3}")
        e(f"v_fma_f32 v{ls}, v{ls}, v{vAL}, v{vS}")
        e(f"v_add_f32 v{vT}, v{vS+1}, v{vS+2}")
        e(f"v_add_f32 v{ls}, v{ls}, v{vS+3}")
        e(f"v_add_f32 v{ls}, v{ls}, v{vT}")
        for ee in range(8):
            e(f"v_mfma_f32_16x16x16_bf16 v[{O+4*ee}:{O+4*ee+3}], v[{vVT+2*ee}:{vVT+2*ee+1}], v[{vP}:{vP+1}], v[{O+4*ee}:{O+4*ee+3}]")

    lab("L_loop")
    for d in range(D):
        c(f"---- stage {d}")
        e(f"v_readlane_b32 s{sOFFN}, v{vUOFF}, s{sKD}")
        e(f"v_readlane_b32 s{sINFO}, v{vINFO}, s{sK}")
        e(f"s_add_u32 m0, s{sLDSB}, {d*4096}")
        if ND:
            e(f"s_sub_u32 s{sT}, s{sN}, s{sK}")
            if PR == 1:
                for lim, pr in ((6, 2), (4, 1), (2, 0)):
                    e(f"s_cmp_lg_u32 s{sT}, {lim+1}")
                    e(f"s_cbranch_scc1 L_pr{pr}_{d}")
                    e(f"s_setprio {pr}")
                    lab(f"L_pr{pr}_{d}")
            if PR == 3:
                e(f"s_cmp_lg_u32 s{sT}, 5")
                e(f"s_cbranch_scc1 L_pr_{d}")
                e(f"s_setprio 0")
                lab(f"L_pr_{d}")
            for r in range(D - 1, 0, -1):
                e(f"s_cmp_gt_u32 s{sT}, {r}")
                e(f"s_cbranch_scc1 L_w{r}_{d}")
            for r in range(0, D):
                if r: lab(f"L_w{r}_{d}")
                e(f"s_waitcnt vmcnt({8*r})")
            e(f"s_cmp_lt_u32 s{sKD}, s{sN}")
            e(f"s_cselect_b32 s{sT3}, 1, 0")
        else:
            e(f"s_waitcnt vmcnt({8*D-8})")
        if d == 0 and stamps:
            e(f"s_cmp_lg_u32 s{sK}, 0")
            e(f"s_cbranch_scc1 L_nost")
            stamp(6)
            lab("L_nost")
        for s in range(4):
            e(f"ds_read_b128 v[{vKF+4*s}:{vKF+4*s+3}], v{vKA+s} offset:{d*4096}")
        vs = vVS + d * 16
        for q in range(4):
            for hi in range(2):
                sel = sPHI if hi else sPLO
                ee = 2 * q + hi
                e(f"v_perm_b32 v{vVT+2*ee}, v{vs+4+q}, v{vs+q}, s{sel}")
                e(f"v_perm_b32 v{vVT+2*ee+1}, v{vs+12+q}, v{vs+8+q}, s{sel}")
        if ND:
            e(f"s_cmp_eq_u32 s{sT3}, 0")
            e(f"s_cbranch_scc1 L_nv_{d}")
        issueV(d, sOFFN)
        if ND: lab(f"L_nv_{d}")
        e(f"s_and_b32 s{sT0}, s{sINFO}, 0xffff")
        e(f"s_lshr_b32 s{sSEG}, s{sINFO}, 16")
        e(f"s_and_b32 s{sT}, s{sSEG}, 3")
        e(f"s_lshl_b32 s{sT}, s{sT}, 2")
        e(f"s_lshl_b64 s[{sMASK}:{sMASK+1}], s[{sPAT}:{sPAT+1}], s{sT}")
        e(f"s_cmp_eq_u32 s{sSEG}, 8")
        e(f"s_cselect_b64 s[{sMASK}:{sMASK+1}], -1, s[{sMASK}:{sMASK+1}]")
        e("s_waitcnt lgkmcnt(0)")
        if ND:
            e(f"s_cmp_eq_u32 s{sT3}, 0")
            e(f"s_cbranch_scc1 L_nk_{d}")
        issueK(d, sOFFN)
        if ND: lab(f"L_nk_{d}")
        if compute:
            e(f"s_bitcmp1_b32 s{sSEG}, 2")
            e(f"s_cbranch_scc1 L_g1_{d}")
            group(0)
            e(f"s_cmp_lt_u32 s{sSEG}, 4")
            e(f"s_cbranch_scc1 L_next_{d}")
            lab(f"L_g1_{d}")
            group(1)
            lab(f"L_next_{d}")
        e(f"s_add_u32 s{sK}, s{sK}, 1")
        e(f"s_add_u32 s{sKD}, s{sKD}, 1")
        e(f"s_cmp_ge_u32 s{sK}, s{sN}")
        if d < D - 1:
            e("s_cbranch_scc1 L_loopdone")
        else:
            e("s_cbranch_scc0 L_loop")
    lab("L_loopdone")
    stamp(7)
    if not epilogue:
        e("s_branch L_end")
    c("reduce l across g, write m/l and O to LDS")
    vACC2 = vKF; vTK = vETK
    e(f"v_mov_b32 v{vT2}, v{vLS}")
    e(f"v_mov_b32 v{vT}, v{vLS+1}")
    e(f"v_mov_b32 v{vS}, v{vM}")
    e(f"v_permlane32_swap_b32 v{vLS}, v{vT2}")
    e(f"v_permlane32_swap_b32 v{vLS+1}, v{vT}")
    e(f"v_add_f32 v{vLS}, v{vLS}, v{vT2}")
    e(f"v_add_f32 v{vLS+1}, v{vLS+1}, v{vT}")
    e(f"v_mov_b32 v{vT2}, v{vLS}")
    e(f"v_mov_b32 v{vT}, v{vLS+1}")
    e(f"v_mov_b32 v{vS+2}, v{vM+1}")
    e("s_waitcnt vmcnt(0)")
    e(f"v_permlane16_swap_b32 v{vLS}, v{vT2}")
    e(f"v_permlane16_swap_b32 v{vLS+1}, v{vT}")
    e(f"v_add_f32 v{vS+1}, v{vLS}, v{vT2}")
    e(f"v_add_f32 v{vS+3}, v{vLS+1}, v{vT}")
    for G, sg in ((0, sG0), (1, sG1)):
        e(f"s_cmp_eq_u32 s{sg}, 0")
        e(f"s_cbranch_scc1 L_skipw{G}")
        for ee in range(8):
            e(f"ds_write_b128 v{vEOW}, v[{vO+G*32+4*ee}:{vO+G*32+4*ee+3}] offset:{G*16*528+ee*16}")
        e(f"ds_write_b64 v{vEML}, v[{vS+2*G}:{vS+2*G+1}] offset:{128*G}")
        lab(f"L_skipw{G}")
    e(f"s_cmp_eq_u32 s{sW}, {NW}")
    e("s_cbranch_scc1 L_nonget")
    lab("L_nonon2")
    e("s_waitcnt lgkmcnt(0)")
    e("s_barrier")
    if CUT == 1: e("s_branch L_end")
    e(f"s_cmp_eq_u32 s{sRD}, 0")
    e("s_cbranch_scc1 L_end")
    if CUT == 2: e("s_branch L_notk")
    e(f"s_cmp_lg_u32 s{sNTK}, 0")
    e("s_cbranch_scc1 L_notk")
    e(f"s_mov_b64 exec, 1")
    e(f"global_atomic_add_x2 v[{vTK}:{vTK+1}], v{vETA}, v[{vTK}:{vTK+1}], s[28:29] sc0 sc1")
    e(f"s_mov_b64 exec, -1")
    lab("L_notk")
    stamp(8)
    vML = vKF
    vOO = vO
    e(f"ds_read_b32 v{vS+1}, v{vENA}")
    for ws in range(8):
        e(f"ds_read_b64 v[{vML+2*ws}:{vML+2*ws+1}], v{vERM} offset:{ws*256}")
    for ws in range(8):
        va = vERO0 if ws < 4 else vERO1
        off = (ws & 3) * RS
        e(f"ds_read_b128 v[{vOO+8*ws}:{vOO+8*ws+3}], v{va} offset:{off}")
        e(f"ds_read_b128 v[{vOO+8*ws+4}:{vOO+8*ws+7}], v{va} offset:{off+16}")
        if ws == 2: e("s_waitcnt lgkmcnt(6)")
    vACC = vVS
    vPB = vVT
    gmap = [0, 1, 2, 4, 5, 6, 8, 9]
    vMM, vLL, vW = vS + 2, vS + 3, vLS
    e(f"v_max3_f32 v{vMM}, v{vML}, v{vML+2}, v{vML+4}")
    e(f"v_max3_f32 v{vMM}, v{vMM}, v{vML+6}, v{vML+8}")
    e(f"v_max3_f32 v{vMM}, v{vMM}, v{vML+10}, v{vML+12}")
    e(f"v_max_f32 v{vMM}, v{vMM}, v{vML+14}")
    e(f"v_mul_f32 v{vMM}, s{sC}, v{vMM}")
    for ws in range(8):
        e(f"v_fma_f32 v{vML+2*ws}, v{vML+2*ws}, s{sC}, -v{vMM}")
    for ws in range(8):
        e(f"v_exp_f32 v{vML+2*ws}, v{vML+2*ws}")
    e(f"v_readfirstlane_b32 s{sNON}, v{vS+1}")
    e(f"v_mul_f32 v{vLL}, v{vML}, v{vML+1}")
    for ws in range(1, 8):
        e(f"v_fmac_f32 v{vLL}, v{vML+2*ws}, v{vML+2*ws+1}")
    e(f"v_mov_b32 v{vPB+3}, v{vS+1}")
    e(f"v_max_f32 v{vAL}, 0x{f2u(1e-30):08x}, v{vLL}")
    e(f"v_log_f32 v{vLL}, v{vAL}")
    e(f"v_rcp_f32 v{vAL}, v{vAL}")
    e(f"v_mov_b32 v{vPB+7}, v{vS+1}")
    e(f"v_mov_b32 v{vPB+11}, v{vS+1}")
    e(f"v_add_f32 v{vPB+10}, v{vMM}, v{vLL}")
    for ws in range(8):
        e(f"v_mul_f32 v{vML+2*ws}, v{vML+2*ws}, v{vAL}")
    e("s_waitcnt lgkmcnt(0)")
    for i in range(4):
        e(f"v_pk_mul_f32 v[{vACC+2*i}:{vACC+2*i+1}], v[{vOO+2*i}:{vOO+2*i+1}], v[{vML}:{vML+1}] op_sel_hi:[1,0]")
    for ws in range(1, 7):
        for i in range(4):
            e(f"v_pk_fma_f32 v[{vACC+2*i}:{vACC+2*i+1}], v[{vOO+8*ws+2*i}:{vOO+8*ws+2*i+1}], v[{vML+2*ws}:{vML+2*ws+1}], v[{vACC+2*i}:{vACC+2*i+1}] op_sel_hi:[1,0,1]")
    for i in range(8):
        e(f"v_fma_f32 v{vPB+gmap[i]}, v{vOO+56+i}, v{vML+14}, v{vACC+i}")
    stamp(9)
    if CUT == 2: e("s_branch L_end")
    def publish():
        for g in range(3):
            e(f"buffer_store_dwordx4 v[{vPB+4*g}:{vPB+4*g+3}], v{vEX16}, s[{sR1}:{sR1+3}], s{sOWN} offen offset:{1024*g} {hs}")
    e(f"s_cmp_lg_u32 s{sMUL}, 0")
    e("s_cbranch_scc1 L_multi")
    e("s_waitcnt vmcnt(0)")
    lab("L_havetk")
    e(f"v_readfirstlane_b32 s{sT2}, v{vTK}")
    e(f"v_readfirstlane_b32 s{sT2+1}, v{vTK+1}")
    e(f"v_mov_b32 v{vW}, 1.0")
    e(f"s_lshr_b64 s[{sT2}:{sT2+1}], s[{sT2}:{sT2+1}], s{sHI}")
    e(f"s_and_b32 s{sT}, s{sT2}, 0xff")
    e(f"s_cmp_eq_u32 s{sT}, s{sEXP}")
    e("s_cbranch_scc0 L_publish")
    if CUT == 3: e("s_branch L_end")
    e(f"s_cmp_eq_u32 s{sGN}, 0")
    e("s_cbranch_scc1 L_final")
    c("last arriver: gather other partials (validated by tag); slots NB-N..NB-1 are live")
    def ladder(tag):
        def rec(lo, hi):
            if lo == hi:
                e(f"s_branch {tag}_{NB-lo}")
                return
            mid = (lo + hi + 1) // 2
            l = f"{tag}_t{lo}_{hi}"
            e(f"s_cmp_ge_u32 s{sGN}, {mid}")
            if mid == hi:
                e(f"s_cbranch_scc1 {tag}_{NB-hi}")
                rec(lo, mid - 1)
            else:
                e(f"s_cbranch_scc1 {l}")
                rec(lo, mid - 1)
                lab(l)
                rec(mid, hi)
        rec(1, NB)
    lab("L_gather")
    stamp(11)
    ladder("L_ga")
    for j in range(NB):
        b0 = vG0 + j * 12
        lab(f"L_ga_{j}")
        e(f"buffer_load_dwordx4 v[{b0+8}:{b0+11}], v{vEX16}, s[{sR1}:{sR1+3}], s{sGO+j} offen offset:2048 {hl}")
    ladder("L_gb")
    for j in range(NB):
        b0 = vG0 + j * 12
        lab(f"L_gb_{j}")
        for g in range(2):
            e(f"buffer_load_dwordx4 v[{b0+4*g}:{b0+4*g+3}], v{vEX16}, s[{sR1}:{sR1+3}], s{sGO+j} offen offset:{1024*g} {hl}")
    vTmin, vTmax = vT, vT2
    vW2 = vLS + 1
    e(f"v_mov_b32 v{vMN}, v{vPB+10}")
    e(f"v_mov_b32 v{vTmin}, s{sNON}")
    e(f"v_mov_b32 v{vTmax}, s{sNON}")
    ladder("L_gc")
    for j in range(NB):
        b0 = vG0 + j * 12
        lab(f"L_gc_{j}")
        c("entry j: all lse granules landed when <= 2*(NB-j) loads remain; later entries are no-ops") if j == 0 else None
        e(f"s_waitcnt vmcnt({2*(NB-j)})")
        e(f"s_branch L_gd_{j}")
    for j in range(NB):
        b0 = vG0 + j * 12
        lab(f"L_gd_{j}")
        e(f"v_max_f32 v{vMN}, v{vMN}, v{b0+10}")
        e(f"v_min_u32 v{vTmin}, v{vTmin}, v{b0+11}")
        e(f"v_max_u32 v{vTmax}, v{vTmax}, v{b0+11}")
    stamp(12)
    e(f"v_sub_f32 v{vAL}, v{vPB+10}, v{vMN}")
    e(f"v_exp_f32 v{vAL}, v{vAL}")
    e("s_nop 0")
    for i in range(8):
        e(f"v_mul_f32 v{vACC2+i}, v{vAL}, v{vPB+gmap[i]}")
    e(f"v_mul_f32 v{vW2}, v{vAL}, v{vW}")
    ladder("L_ge")
    for j in range(NB):
        b0 = vG0 + j * 12
        lab(f"L_ge_{j}")
        e(f"v_sub_f32 v{b0+10}, v{b0+10}, v{vMN}")
        e(f"v_exp_f32 v{b0+10}, v{b0+10}")
        e(f"s_waitcnt vmcnt({2*(NB-1-j)})")
        e(f"v_min3_u32 v{vTmin}, v{vTmin}, v{b0+3}, v{b0+7}")
        e(f"v_max3_u32 v{vTmax}, v{vTmax}, v{b0+3}, v{b0+7}")
        e(f"v_add_f32 v{vW2}, v{vW2}, v{b0+10}")
        e(f"v_pk_fma_f32 v[{vACC2}:{vACC2+1}], v[{b0}:{b0+1}], v[{b0+10}:{b0+11}], v[{vACC2}:{vACC2+1}] op_sel_hi:[1,0,1]")
        e(f"v_fmac_f32 v{vACC2+2}, v{b0+10}, v{b0+2}")
        e(f"v_fmac_f32 v{vACC2+3}, v{b0+10}, v{b0+4}")
        e(f"v_fmac_f32 v{vACC2+4}, v{b0+10}, v{b0+5}")
        e(f"v_fmac_f32 v{vACC2+5}, v{b0+10}, v{b0+6}")
        e(f"v_pk_fma_f32 v[{vACC2+6}:{vACC2+7}], v[{b0+8}:{b0+9}], v[{b0+10}:{b0+11}], v[{vACC2+6}:{vACC2+7}] op_sel_hi:[1,0,1]")
    e(f"v_cmp_ne_u32 vcc, v{vTmin}, v{vTmax}")
    e(f"v_rcp_f32 v{vAL}, v{vW2}")
    e(f"s_cmp_lg_u64 s[{sCM}:{sCM+1}], 0")
    e("s_cbranch_vccnz L_gather")
    e("s_cbranch_scc1 L_gather2")
    lab("L_fin2")
    for i in range(4):
        e(f"v_pk_mul_f32 v[{vACC2+2*i}:{vACC2+2*i+1}], v[{vACC2+2*i}:{vACC2+2*i+1}], v[{vAL}:{vAL+1}] op_sel_hi:[1,0]")
    for r in range(4):
        e(f"v_cvt_pk_bf16_f32 v{vACC2+r}, v{vACC2+r}, v{vACC2+4+r}")
    if CUT == 4: e("s_branch L_end")
    if TR:
        a = vACC2; b = vACC2 + 4; cc = vACC2 + 8
        sw1 = "quad_perm:[1,0,3,2] row_mask:0xf bank_mask:0xf"
        sw2 = "quad_perm:[2,3,0,1] row_mask:0xf bank_mask:0xf"
        e("s_mov_b32 vcc_lo, 0x55555555")
        e("s_mov_b32 vcc_hi, 0x55555555")
        e(f"v_cndmask_b32_dpp v{b}, v{a+1}, v{a}, vcc {sw1}")
        e(f"v_cndmask_b32_dpp v{b+2}, v{a+3}, v{a+2}, vcc {sw1}")
        e("s_not_b64 vcc, vcc")
        e(f"v_cndmask_b32_dpp v{b+1}, v{a}, v{a+1}, vcc {sw1}")
        e(f"v_cndmask_b32_dpp v{b+3}, v{a+2}, v{a+3}, vcc {sw1}")
        e("s_mov_b32 vcc_lo, 0x33333333")
        e("s_mov_b32 vcc_hi, 0x33333333")
        e(f"v_cndmask_b32_dpp v{cc}, v{b+2}, v{b}, vcc {sw2}")
        e(f"v_cndmask_b32_dpp v{cc+1}, v{b+3}, v{b+1}, vcc {sw2}")
        e("s_not_b64 vcc, vcc")
        e(f"v_cndmask_b32_dpp v{cc+2}, v{b}, v{b+2}, vcc {sw2}")
        e(f"v_cndmask_b32_dpp v{cc+3}, v{b+1}, v{b+3}, vcc {sw2}")
        e(f"buffer_store_dwordx4 v[{cc}:{cc+3}], v{vEX16}, s[{sR2}:{sR2+3}], s{sOUT} offen {op}")
    else:
        for r in range(4):
            e(f"buffer_store_dword v{vACC2+r}, v{vEOA}, s[{sR2}:{sR2+3}], s{sOUT} offen offset:{16*r} {op}")
    stamp(13)
    if stamps: e("s_waitcnt vmcnt(0)")
    stamp(14)
    lab("L_end")
    stampflush()
    lab("L_end2")
    e("s_endpgm")
    c("---- side paths")
    lab("L_nonget")
    e(f"s_load_dword s{sT}, s[28:29], 128")
    e("s_waitcnt lgkmcnt(0)")
    e(f"s_cmp_lg_u32 s{sT}, 0")
    e("s_cbranch_scc1 L_nonput")
    nonce_req()
    e("s_waitcnt vmcnt(0)")
    e(f"v_readfirstlane_b32 s{sT}, v{vNON}")
    e(f"s_cmp_eq_u32 s{sT}, 0")
    e(f"s_cselect_b32 s{sT}, s{sCAND}, s{sT}")
    lab("L_nonput")
    e(f"v_mov_b32 v{vT}, s{sT}")
    e(f"ds_write_b32 v{vENA}, v{vT}")
    e("s_branch L_nonon2")
    lab("L_publish")
    e(f"s_cmp_lg_u32 s{sMUL}, 0")
    e("s_cbranch_scc1 L_end")
    publish()
    stamp(10)
    e("s_branch L_end")
    lab("L_final")
    for i in range(8):
        e(f"v_mov_b32 v{vACC2+i}, v{vPB+gmap[i]}")
    e(f"v_mov_b32 v{vAL}, 1.0")
    e("s_branch L_fin2")
    lab("L_multi")
    c("wave 0 took the tickets of all 8 batches: share them through LDS")
    publish()
    e(f"v_mov_b32 v{vS}, {PSL+40}")
    e(f"s_cmp_lg_u32 s{sW}, 0")
    e("s_cbranch_scc1 L_multi2")
    e("s_waitcnt vmcnt(3)")
    e("s_mov_b64 exec, 1")
    e(f"ds_write_b64 v{vS}, v[{vTK}:{vTK+1}]")
    e("s_mov_b64 exec, -1")
    e("s_waitcnt lgkmcnt(0)")
    lab("L_multi2")
    e("s_barrier")
    e(f"ds_read_b64 v[{vTK}:{vTK+1}], v{vS}")
    e("s_waitcnt lgkmcnt(0)")
    e("s_branch L_havetk")
    lab("L_gather2")
    for i in range(8):
        e(f"v_mov_b32 v{vPB+gmap[i]}, v{vACC2+i}")
    e(f"v_mov_b32 v{vPB+10}, v{vMN}")
    e(f"v_mov_b32 v{vW}, v{vW2}")
    goffs()
    e("s_branch L_gather")
    if NSPEC:
        lab("L_mispec")
        e("s_waitcnt vmcnt(0)")
        for k in range(NSPEC):
            e(f"s_add_u32 m0, s{sLDSB}, {k*4096}")
            e("s_nop 0")
            issueK(k, sRL + k)
            issueV(k, sRL + k)
        e("s_branch L_specok")
    lab("L_zq")
    c("ctx<=0: reference softmax is uniform over all positions -> zero those Q rows")
    for b in range(8):
        e(f"s_bitcmp1_b32 s{sZQ}, {b}")
        e(f"s_cbranch_scc0 L_zq{b}")
        e(f"s_lshl_b64 exec, s[{sPAT}:{sPAT+1}], {4*(b&3)}")
        for i in range(16):
            e(f"v_mov_b32 v{vQ+(b>>2)*16+i}, 0")
        lab(f"L_zq{b}")
    e("s_mov_b64 exec, -1")
    e("s_branch L_noz")
    o.append('.section .rodata,"a"')
    o.append(".p2align 6")
    o.append(f".amdhsa_kernel {NAME}_kernel")
    o.append(f"  .amdhsa_next_free_vgpr {NV}")
    o.append("  .amdhsa_next_free_sgpr 102")
    o.append(f"  .amdhsa_accum_offset {(NV+3)//4*4}")
    o.append("  .amdhsa_group_segment_fixed_size 0")
    o.append("  .amdhsa_kernarg_size 64")
    o.append("  .amdhsa_user_sgpr_count 2")
    o.append("  .amdhsa_user_sgpr_kernarg_segment_ptr 1")
    o.append("  .amdhsa_system_sgpr_workgroup_id_x 1")
    o.append(".end_amdhsa_kernel")
    return "\n".join(o) + "\n"

if __name__ == "__main__":
    kw = {}
    out = sys.argv[1]
    for a in sys.argv[2:]:
        k, v = a.split("=")
        kw[k] = v if k in ("ldpol", "hs", "hl", "op", "GIVE", "DST") else (float(v) if k.startswith("PHI") else int(v))
    open(out, "w").write(gen(**kw))
```

```python
import sys, math, struct
NAME = "standalone__paged_block_table_kv_radixattention__decode"
def f2u(f): return struct.unpack("<I", struct.pack("<f", f))[0]

def gen(D=2, stamps=0, compute=1, ldpol="nt", epilogue=1, NSPEC=1, PHI=0.89, NB=12, TD=0, X3=0, X7=0, HX=1, EB=1, PHI2=0.83, XA=1, ND=1, NW=1, NA=8, op="", CUT=0, TR=1, EC=1, UP=1, SL=0, EQ=1, SPF=0, S2=0, PR=0, NON=1, DRY=-1, GIVE="", DST="", hs="sc0 sc1", hl="sc0 sc1"):
    o = []
    def e(s): o.append("    " + s)
    def lab(s): o.append(s + ":")
    def c(s): o.append("    ; " + s)

    RS = 16896
    ML = 8 * RS
    TAB = ML + 2048
    QB = TAB + 16384
    PSL = QB + 8192
    LDS = PSL + 64
    KVB = 75497472
    CSC = math.log2(math.e) / math.sqrt(128.0)

    ectx = [8192 - ((i + 1) * 2654435761) % 2048 for i in range(8)]
    eP = 256
    enb = [(x + 15) // 16 for x in ectx]
    eS = eP
    eoff = [eS]
    for b in range(8): eoff.append(eoff[-1] + enb[b] - eP)
    ePv = eoff[8] - eS
    eU = eoff[8]

    sW, sH, sS = 3, 4, 5
    sK, sKD, sN = 6, 7, 8
    sP, sSH, sNSL, sU0, sU1 = 9, 10, 11, 12, 13
    sC = 14
    sLDSB = 15
    sCTX = 32
    sKR, sVR, sR1, sR2 = 40, 44, 48, 52
    sOFF = 56
    sCB = 65
    sT0, sSEG, sINFO, sOFFN = 73, 74, 75, 76
    sPLO, sPHI = 77, 78
    sT = 79
    sMASK = 80
    sPAT = 82
    sC0 = 84
    sCM, sLO, sHI = 92, 94, 95
    sEXP = 17
    sT2 = 96
    sG0, sG1 = 98, 99
    sT3 = 100
    sST = 101
    sZQ = 16
    sSP = 22
    vLANE = 1
    vKD = 2; vVO = 6; vKA = 8
    vUOFF, vINFO = 12, 13
    vCT = 14; vNINF = 16; vM = 17; vLS = 19
    vT, vAL, vT2 = 21, 22, 24
    vMC, vREL, vMN = 25, 26, 27
    vP = 28; vX, vY = 30, 31
    vS = 32; vKF = 36; vVT = 52; vQ = 68; vO = 100; vVS = 164
    NV = max(vVS + 16 * D, vQ + NB * 12)
    vNON = 0
    sCAND = 18
    sNON = 19
    vE0 = (NV + 1) & ~1
    vETK, vEML, vEOW, vERM, vERO0, vERO1, vEOA, vETA, vEX16, vENA = vE0, vE0+2, vE0+3, vE0+4, vE0+5, vE0+6, vE0+7, vE0+8, vE0+9, vE0+10
    NV = vE0 + 11
    sOWN, sOUT, sMUL, sNTK, sRD, sGN = 32, 33, 34, 35, 36, 37
    vSX, vSY = NV, NV + 1
    if stamps: NV += 2

    def stamp(idx):
        if not stamps: return
        if stamps == 2 and idx not in (0, 7, 14): return
        e(f"s_memrealtime s[{sT2}:{sT2+1}]")
        e(f"s_waitcnt lgkmcnt(0)")
        e(f"v_writelane_b32 v{vSX}, s{sT2}, {idx}")
    def stampflush():
        if not stamps: return
        e(f"s_lshl_b32 s{sST}, s2, 3")
        e(f"s_add_u32 s{sST}, s{sST}, s{sW}")
        e(f"s_lshl_b32 s{sST}, s{sST}, 6")
        e(f"s_add_u32 s{sST}, s{sST}, {301989888 - (1<<20)}")
        e(f"s_mov_b64 exec, 0xffff")
        e(f"v_lshlrev_b32 v{vSY}, 2, v{vLANE}")
        e(f"v_add_u32 v{vSY}, s{sST}, v{vSY}")
        e(f"global_store_dword v{vSY}, v{vSX}, s[30:31]")

    def plan_slices(S, U, a):
        a0, a1, a2, a3, a4, a5, vA, vE = [a + i for i in range(8)]
        e(f"v_cvt_f32_u32 v{a0}, {U}")
        e(f"v_cvt_f32_u32 v{a1}, {S}")
        e(f"v_cvt_f32_u32 v{a2}, s{sNSL}")
        e(f"v_rcp_f32 v{a3}, v{a0}")
        e(f"v_mul_f32 v{a1}, 0x{f2u(1.0/PHI):08x}, v{a1}")
        e(f"v_mul_f32 v{a1}, v{a1}, v{a2}")
        e(f"v_mul_f32 v{a1}, v{a1}, v{a3}")
        e(f"v_ceil_f32 v{a1}, v{a1}")
        e(f"v_min_f32 v{a1}, v{a1}, v{a2}")
        e(f"v_mov_b32 v{a3}, 0x{f2u(PHI-1.0):08x}")
        if PHI2 != 1.0:
            e(f"v_subrev_f32 v{a4}, 0x{f2u(32.0):08x}, v{a2}")
            e(f"v_max_f32 v{a4}, 0, v{a4}")
            e(f"v_mul_f32 v{a4}, 0x{f2u(PHI2-1.0):08x}, v{a4}")
            e(f"v_add_f32 v{a2}, v{a2}, v{a4}")
        e(f"v_fma_f32 v{a2}, v{a1}, v{a3}, v{a2}")
        e(f"v_rcp_f32 v{a2}, v{a2}")
        e(f"v_cvt_f32_u32 v{a4}, v{vLANE}")
        e(f"v_mul_f32 v{a2}, v{a2}, v{a0}")
        e(f"v_add_f32 v{a5}, 1.0, v{a4}")
        for x, d in ((a4, vA), (a5, vE)):
            e(f"v_min_f32 v{d}, v{x}, v{a1}")
            e(f"v_fma_f32 v{d}, v{d}, v{a3}, v{x}")
            if PHI2 != 1.0:
                e(f"v_subrev_f32 v{x}, 0x{f2u(32.0):08x}, v{x}")
                e(f"v_max_f32 v{x}, 0, v{x}")
                e(f"v_mul_f32 v{x}, 0x{f2u(PHI2-1.0):08x}, v{x}")
                e(f"v_add_f32 v{d}, v{d}, v{x}")
            e(f"v_fma_f32 v{d}, v{d}, v{a2}, 0.5")
            e(f"v_cvt_u32_f32 v{d}, v{d}")
        e(f"v_add_u32 v{a4}, 1, v{vLANE}")
        e(f"v_mov_b32 v{a0}, {U}")
        e(f"v_cmp_le_u32 vcc, s{sNSL}, v{a4}")
        e(f"v_min_u32 v{vA}, v{vA}, v{a0}")
        e(f"v_min_u32 v{vE}, v{vE}, v{a0}")
        e(f"v_cndmask_b32 v{vE}, v{vE}, v{a0}, vcc")
        e(f"v_cmp_le_u32 vcc, s{sNSL}, v{vLANE}")
        e("s_nop 1")
        e(f"v_cndmask_b32 v{vA}, v{vA}, v{a0}, vcc")

    def issueV(d, soff):
        for i in range(4):
            e(f"buffer_load_dwordx4 v[{vVS+d*16+i*4}:{vVS+d*16+i*4+3}], v{vVO+(i>>1)}, s[{sVR}:{sVR+3}], s{soff} offen offset:{(i&1)*2048} {ldpol}")
    def issueK(d, soff):
        for i in range(4):
            e(f"buffer_load_dwordx4 v{vKD+i}, s[{sKR}:{sKR+3}], s{soff} offen offset:{i*1024} {ldpol} lds")

    hdr = open(f"cdna_kernels/{NAME}.s.ref").read().split("\n")
    for ln in hdr:
        if ln.startswith("; @launch"): break
        o.append(ln)
    o.append(f"; @launch grid=(256,1,1) block=(512,1,1) lds={LDS}")
    o.append('.amdgcn_target "amdgcn-amd-amdhsa--gfx950"')
    o.append(".text")
    for ln in """
 Paged GQA decode attention with a shared-prefix (radix) fast path.  One workgroup = one kv head x one
 contiguous slice of the unit list; unit = one 16-token block.  The list is built at run time from
 block_table / ctx_lens: [blocks whose physical id is equal in all 8 rows: read once, 32 query rows]
 ++ [per batch: remaining blocks below ctx_len].  Any table / ctx is handled (prefix length may be 0..512).
 Per unit: K via LDS-DMA (xor swizzle) -> S^T = K Q^T (16x16x32), mask, online softmax (true running max),
 V loaded row-major, transposed with v_perm, O^T += V^T P^T (16x16x16).  Waves merge through LDS, the
 workgroups of a (batch, head) hand partials {O/l, lse} over through d_ws: every 16-byte granule carries a
 per-launch tag (agreed through d_debug), a ticket in d_debug elects the last arriver, which merges them.
 The first unit of every wave is prefetched from a predicted address while the real plan is computed; the
 prediction is compared with the real plan and re-issued when it differs (speed hint only).
""".strip("\n").split("\n"): o.append(";" + ln)
    o.append(f".globl {NAME}_kernel")
    o.append(".p2align 8")
    o.append(f".type {NAME}_kernel,@function")
    lab(f"{NAME}_kernel")
    e("s_cmp_ge_u32 s2, 256")
    e("s_cbranch_scc1 L_end2")
    if stamps: e(f"v_mov_b32 v{vSX}, 0")
    stamp(0)
    e("s_load_dwordx16 s[16:31], s[0:1], 0")
    if PR in (1, 3): e("s_setprio 3")
    e(f"v_lshrrev_b32 v{vT}, 6, v0")
    e(f"v_and_b32 v{vLANE}, 63, v0")
    e(f"v_readfirstlane_b32 s{sW}, v{vT}")
    e(f"s_and_b32 s{sH}, s2, 7")
    if HX: e(f"s_xor_b32 s{sH}, s{sH}, {HX}")
    e(f"s_lshr_b32 s{sS}, s2, 3")
    if GIVE:
        give = [int(ch) for ch in GIVE]; dst = [int(ch) for ch in DST]
        tot = [0, 0]; base = [0]*8
        for cx in range(8):
            base[cx] = tot[dst[cx]]; tot[dst[cx]] += give[cx]
        nsl = [32 - give[cx] for cx in range(8)]
        nsl[0] = 32 + tot[0]; nsl[4] = 32 + tot[1]
        t1 = sum((nsl[cx] - 28) << (4*cx) for cx in range(8))
        t2 = sum(((base[cx] << 1) | dst[cx]) << (4*cx) for cx in range(8))
        e(f"s_and_b32 s{sT}, s2, 7")
        e(f"s_lshl_b32 s{sT}, s{sT}, 2")
        e(f"s_lshr_b32 s{sNSL}, 0x{t1:08x}, s{sT}")
        e(f"s_and_b32 s{sNSL}, s{sNSL}, 15")
        e(f"s_add_u32 s{sNSL}, s{sNSL}, 28")
        e(f"s_cmp_ge_u32 s{sS}, s{sNSL}")
        e(f"s_cbranch_scc0 L_map2")
        e(f"s_lshr_b32 s{sT}, 0x{t2:08x}, s{sT}")
        e(f"s_sub_u32 s{sS}, s{sS}, s{sNSL}")
        e(f"s_bfe_u32 s{sT3}, s{sT}, 0x30001")
        e(f"s_add_u32 s{sS}, s{sS}, s{sT3}")
        e(f"s_add_u32 s{sS}, s{sS}, 32")
        e(f"s_bitcmp1_b32 s{sT}, 0")
        e(f"s_cselect_b32 s{sH}, 5, 1")
        e(f"s_cselect_b32 s{sNSL}, {nsl[4]}, {nsl[0]}")
        lab("L_map2")
    elif XA:
        e(f"s_and_b32 s{sT}, s{sH}, 3")
        e(f"s_cmp_eq_u32 s{sT}, 1")
        e(f"s_cselect_b32 s{sNSL}, 35, 31")
        e(f"s_cmp_ge_u32 s{sS}, s{sNSL}")
        e(f"s_cbranch_scc0 L_map2")
        e(f"s_max_u32 s{sT}, s{sT}, 1")
        e(f"s_add_u32 s{sS}, s{sT}, 31")
        e(f"s_and_b32 s{sH}, s{sH}, 4")
        e(f"s_or_b32 s{sH}, s{sH}, 1")
        e(f"s_mov_b32 s{sNSL}, 35")
        lab("L_map2")
    else:
        e(f"s_mov_b32 s{sNSL}, 32")
    for hh, X in ((3, X3), (7, X7)):
        if not X: continue
        e(f"s_cmp_eq_u32 s{sH}, {hh}")
        e(f"s_cselect_b32 s{sNSL}, {32-X}, s{sNSL}")
    if X3 or X7:
        e(f"s_cmp_ge_u32 s{sS}, s{sNSL}")
        e(f"s_cbranch_scc0 L_map")
        e(f"s_sub_u32 s{sS}, s{sS}, s{sNSL}")
        e(f"s_add_u32 s{sS}, s{sS}, 32")
        e(f"s_sub_u32 s{sH}, s{sH}, 2")
        lab("L_map")
    for hh, X in ((1, X3), (5, X7)):
        if not X: continue
        e(f"s_cmp_eq_u32 s{sH}, {hh}")
        e(f"s_cselect_b32 s{sNSL}, {32+X}, s{sNSL}")
    vRow, vG = vVT, vVT + 1
    t0, t1, t2 = vVT + 2, vVT + 3, vVT + 4
    vQO = vVT + 5
    e(f"v_and_b32 v{vRow}, 15, v{vLANE}")
    e(f"v_lshrrev_b32 v{vG}, 4, v{vLANE}")
    e(f"v_lshlrev_b32 v{vX}, 2, v0")
    e(f"s_lshl_b32 s{sT}, s{sH}, 8")
    e(f"s_mul_i32 s{sLDSB}, s{sW}, {RS}")
    e(f"v_lshlrev_b32 v{vVO}, 13, v{vG}")
    e(f"v_lshl_add_u32 v{vVO}, v{vRow}, 4, v{vVO}")
    e(f"v_add_u32 v{vVO}, s{sT}, v{vVO}")
    e(f"v_add_u32 v{vVO+1}, 0x1000, v{vVO}")
    e(f"v_xor_b32 v{t0}, v{vG}, v{vRow}")
    e(f"v_lshlrev_b32 v{t1}, 11, v{vG}")
    e(f"v_add_u32 v{t1}, s{sT}, v{t1}")
    for i in range(4):
        if i: e(f"v_xor_b32 v{t2}, {4*i}, v{t0}")
        e(f"v_lshl_add_u32 v{vKD+i}, v{t2 if i else t0}, 4, v{t1}")
        if i: e(f"v_add_u32 v{vKD+i}, {i*8192-i*1024}, v{vKD+i}")
    e(f"v_add_u32 v{vY}, 0x1000, v{vX}")
    e(f"v_add_u32 v{vT}, 0x2000, v{vX}")
    e(f"v_add_u32 v{vT2}, 0x3000, v{vX}")
    e(f"s_and_b32 s{sT3}, s{sW}, 3")
    e(f"s_lshl_b32 s{sT3}, s{sT3}, 2")
    e(f"v_xor_b32 v{vQO}, s{sT3}, v{t0}")
    e(f"v_lshlrev_b32 v{vQO}, 4, v{vQO}")
    e(f"v_lshl_add_u32 v{vQO}, v{vG}, 8, v{vQO}")
    e(f"s_lshl_b32 s{sLO}, s{sW}, 13")
    e(f"s_lshl_b32 s{sT3}, s{sH}, 10")
    e(f"s_add_u32 s{sLO}, s{sLO}, s{sT3}")
    e(f"s_lshl_b32 s{sHI}, s{sW}, 10")
    e(f"s_add_u32 s{sHI}, s{sHI}, {QB}")
    for r, n in ((sR1, 16384), (sR2, 65536), (sKR, KVB), (sVR, KVB)):
        e(f"s_mov_b32 s{r+2}, {n}")
        e(f"s_mov_b32 s{r+3}, 0x00020000")
    if NSPEC:
        c("predicted first units (prefetch hint only)")
        assert XA and not GIVE
        def model(nsl):
            m = min(math.ceil(eS * nsl / (PHI * eU)), nsl)
            L = eU / (nsl + (PHI2 - 1.0) * max(nsl - 32, 0) + (PHI - 1.0) * m)
            st = []
            for x in range(nsl):
                v = (x + (PHI - 1.0) * min(x, m) + (PHI2 - 1.0) * max(x - 32, 0)) * L + 0.5
                assert abs(v - round(v)) > 0.004, (nsl, x, v)
                st.append(int(v))
            A1 = round(PHI * L * 65536); A2 = round(L * 65536); A3 = round((PHI2 - 1.0) * L * 65536)
            for x in range(nsl):
                assert (A1 * min(x, m) + A2 * max(x - m, 0) + A3 * max(x - 32, 0) + 32768) >> 16 == st[x], (nsl, x)
            return m, A1, A2, A3
        m1, A1n, A2n, _ = model(31); m2, A1s, A2s, A3s = model(35)
        e(f"s_cmp_eq_u32 s{sNSL}, 35")
        e(f"s_cselect_b32 s{sK}, {m2}, {m1}")
        e(f"s_mov_b32 s{sKD}, {A1n - A2n}")
        e(f"s_cselect_b32 s{sKD}, {A1s - A2s}, s{sKD}")
        e(f"s_mov_b32 s{sN}, {A2n}")
        e(f"s_cselect_b32 s{sN}, {A2s}, s{sN}")
        e(f"s_min_u32 s{sK}, s{sK}, s{sS}")
        e(f"s_mul_i32 s{sK}, s{sK}, s{sKD}")
        e(f"s_mul_i32 s{sN}, s{sN}, s{sS}")
        e(f"s_sub_i32 s{sT}, s{sS}, 32")
        e(f"s_max_i32 s{sT}, s{sT}, 0")
        e(f"s_mul_i32 s{sT}, s{sT}, {A3s}")
        e(f"s_add_u32 s{sK}, s{sK}, s{sN}")
        e(f"s_add_u32 s{sT}, s{sT}, s{sK}")
        e(f"s_add_u32 s{sT}, s{sT}, 32768")
        e(f"s_lshr_b32 s{sT}, s{sT}, 16")
        e(f"s_add_u32 s{sT}, s{sT}, s{sW}")
        if S2: e(f"s_add_u32 s{sC0+2}, s{sT}, 8")
        for k in range(NSPEC):
            if k: e(f"s_add_u32 s{sT}, s{sT}, {NA}")
            e(f"s_mov_b32 s{sT3}, 0")
            for b in range(1, 8):
                e(f"s_cmp_ge_u32 s{sT}, {eoff[b]}")
                e(f"s_cselect_b32 s{sT3}, {eP + 256*b - eoff[b]}, s{sT3}")
            e(f"s_add_u32 s{sT3}, s{sT3}, s{sT}")
            e(f"s_lshl_b32 s{sC0+k}, s{sT3}, 15")
            if NA < 8:
                e(f"s_cmp_ge_u32 s{sW}, {NA}")
                e(f"s_cselect_b32 s{sC0+k}, 0x80000000, s{sC0+k}")
    if SPF:
        e(f"s_mov_b32 m0, s{sLDSB}")
        e("s_waitcnt lgkmcnt(0)")
        stamp(1)
        e(f"s_mov_b32 s{sKR}, s18")
        e(f"s_mov_b32 s{sKR+1}, s19")
        e(f"s_mov_b32 s{sVR}, s20")
        e(f"s_mov_b32 s{sVR+1}, s21")
        issueK(0, sC0)
        if SPF == 1: issueV(0, sC0)
        e(f"s_mov_b32 m0, s{sHI}")
        e(f"s_mov_b32 s{sR1}, s22")
        e(f"s_mov_b32 s{sR1+1}, s23")
        e(f"s_load_dwordx8 s[{sCTX}:{sCTX+7}], s[24:25], 0")
        vTB = vKF
        for b in range(8):
            va = [vX, vY, vT, vT2][b >> 1]
            e(f"buffer_load_dword v{vTB+b}, v{va}, s[{sR1}:{sR1+3}], 0 offen offset:{(b&1)*2048}")
        e(f"s_mov_b32 s{sR2}, s16")
        e(f"s_mov_b32 s{sR2+1}, s17")
        e(f"buffer_load_dwordx4 v{vQO}, s[{sR2}:{sR2+3}], s{sLO} offen lds")
        if SPF == 2:
            if EB: e("s_barrier")
            issueV(0, sC0)
    else:
        e(f"s_mov_b32 m0, s{sHI}")
        e("s_waitcnt lgkmcnt(0)")
        stamp(1)
        e(f"s_mov_b32 s{sR1}, s22")
        e(f"s_mov_b32 s{sR1+1}, s23")
        e(f"s_load_dwordx8 s[{sCTX}:{sCTX+7}], s[24:25], 0")
        vTB = vKF
        for b in range(8):
            va = [vX, vY, vT, vT2][b >> 1]
            e(f"buffer_load_dword v{vTB+b}, v{va}, s[{sR1}:{sR1+3}], 0 offen offset:{(b&1)*2048}")
        e(f"s_mov_b32 s{sR2}, s16")
        e(f"s_mov_b32 s{sR2+1}, s17")
        e(f"s_mov_b32 s{sKR}, s18")
        e(f"s_mov_b32 s{sKR+1}, s19")
        e(f"buffer_load_dwordx4 v{vQO}, s[{sR2}:{sR2+3}], s{sLO} offen lds")
        e(f"s_mov_b32 s{sVR}, s20")
        e(f"s_mov_b32 s{sVR+1}, s21")
        if EB: e("s_barrier")
        for k in range(NSPEC):
            e(f"s_add_u32 m0, s{sLDSB}, {k*4096}")
            e("s_nop 0")
            issueK(k, sC0 + k)
            issueV(k, sC0 + k)
    if S2:
        e(f"s_mov_b32 s{sT3}, 0")
        for b in range(1, 8):
            e(f"s_cmp_ge_u32 s{sC0+2}, {eoff[b]}")
            e(f"s_cselect_b32 s{sT3}, {eP + 256*b - eoff[b]}, s{sT3}")
        e(f"s_add_u32 s{sT3}, s{sT3}, s{sC0+2}")
        e(f"s_lshl_b32 s{sC0+1}, s{sT3}, 15")
        e(f"s_add_u32 m0, s{sLDSB}, 4096")
    c("constants")
    e(f"s_mov_b32 s{sC}, 0x{f2u(CSC):08x}")
    e(f"s_mov_b32 s{sPLO}, 0x05040100")
    e(f"s_mov_b32 s{sPHI}, 0x07060302")
    e(f"s_mov_b32 s{sPAT}, 0x000F000F")
    e(f"s_mov_b32 s{sPAT+1}, 0x000F000F")
    e(f"v_lshlrev_b32 v{t1}, 8, v{vRow}")
    e(f"v_add_u32 v{t1}, s{sLDSB}, v{t1}")
    for s in range(4):
        if s: e(f"v_xor_b32 v{t2}, {4*s}, v{t0}")
        e(f"v_lshl_add_u32 v{vKA+s}, v{t2 if s else t0}, 4, v{t1}")
    e(f"v_mov_b32 v{vNINF}, 0xff800000")
    e(f"v_mov_b32 v{vM}, 0xf1800000")
    e(f"v_mov_b32 v{vM+1}, 0xf1800000")
    e(f"v_mov_b32 v{vLS}, 0")
    e(f"v_mov_b32 v{vLS+1}, 0")
    for i in range(64):
        e(f"v_mov_b32 v{vO+i}, 0")
    e(f"v_add_u32 v{vX}, {TAB}, v{vX}")
    c("ctx scalars")
    e("s_waitcnt lgkmcnt(0)")
    e(f"s_mov_b32 s{sSH}, 0")
    e(f"s_mov_b32 s{sZQ}, 0")
    for b in range(8):
        r = sCTX + b
        e(f"s_cmp_lt_i32 s{r}, 1")
        e(f"s_cselect_b32 s{r}, 8192, s{r}")
        e(f"s_cselect_b32 s{sT}, {1<<b}, 0")
        e(f"s_or_b32 s{sZQ}, s{sZQ}, s{sT}")
        e(f"s_min_i32 s{r}, s{r}, 8192")
        e(f"s_add_u32 s{sCB+b}, s{r}, 15")
        e(f"s_lshr_b32 s{sCB+b}, s{sCB+b}, 4")
        e(f"s_max_u32 s{sSH}, s{sSH}, s{sCB+b}")
    for b in range(4):
        e(f"s_lshl_b64 exec, s[{sPAT}:{sPAT+1}], {4*b}")
        e(f"v_mov_b32 v{vCT}, s{sCTX+b}")
        e(f"v_mov_b32 v{vCT+1}, s{sCTX+4+b}")
    e("s_mov_b64 exec, -1")
    e(f"v_lshlrev_b32 v{t1}, 2, v{vG}")
    e(f"v_sub_u32 v{vCT}, v{vCT}, v{t1}")
    e(f"v_sub_u32 v{vCT+1}, v{vCT+1}, v{t1}")
    e(f"s_lshl_b32 s{sT}, s{sW}, 2")
    e(f"s_add_u32 s{sT}, s{sT}, {PSL}")
    e(f"v_mov_b32 v{vY}, s{sT}")
    e(f"s_lshl_b32 s{sT}, s{sW}, 6")
    c("table arrived?")
    e(f"s_waitcnt vmcnt({1+[8*NSPEC,0,4][SPF]})")
    stamp(2)
    for b in range(1, 8):
        e(f"v_xor_b32 v{vTB+8+b}, v{vTB}, v{vTB+b}")
    e(f"v_or3_b32 v{vTB+9}, v{vTB+9}, v{vTB+10}, v{vTB+11}")
    e(f"v_or3_b32 v{vTB+12}, v{vTB+12}, v{vTB+13}, v{vTB+14}")
    e(f"v_or3_b32 v{vTB+9}, v{vTB+9}, v{vTB+12}, v{vTB+15}")
    e(f"v_cmp_ne_u32 vcc, 0, v{vTB+9}")
    for b in range(0, 8, 2):
        e(f"ds_write2st64_b32 v{vX}, v{vTB+b}, v{vTB+b+1} offset0:{b*8} offset1:{(b+1)*8}")
    e(f"s_ff1_i32_b64 s{sP}, vcc")
    e(f"s_add_u32 s{sP}, s{sP}, s{sT}")
    e(f"s_cmp_eq_u64 vcc, 0")
    e(f"s_cselect_b32 s{sP}, 512, s{sP}")
    e(f"v_mov_b32 v{vT}, s{sP}")
    e(f"ds_write_b32 v{vY}, v{vT}")
    e(f"v_mov_b32 v{vY}, {PSL}")
    e(f"s_waitcnt vmcnt({[8*NSPEC,0,4][SPF]}) lgkmcnt(0)")
    e("s_barrier")
    stamp(3)
    if S2 == 1:
        issueK(1, sC0 + 1)
        issueV(1, sC0 + 1)
    e(f"ds_read_b128 v[{vKF}:{vKF+3}], v{vY}")
    e(f"ds_read_b128 v[{vKF+4}:{vKF+7}], v{vY} offset:16")
    c("Q fragments from LDS")
    e(f"s_sub_u32 s{sT}, {QB}, s{sLDSB}")
    for s in range(4):
        e(f"v_add_u32 v{vS+s}, s{sT}, v{vKA+s}")
    for G in range(2):
        for s in range(4):
            e(f"ds_read_b128 v[{vQ+G*16+4*s}:{vQ+G*16+4*s+3}], v{vS+s} offset:{G*4096}")
    if S2 == 2:
        issueK(1, sC0 + 1)
        issueV(1, sC0 + 1)
    e("s_waitcnt lgkmcnt(8)")
    e(f"v_min3_u32 v{vKF}, v{vKF}, v{vKF+1}, v{vKF+2}")
    e(f"v_min3_u32 v{vKF+3}, v{vKF+3}, v{vKF+4}, v{vKF+5}")
    e(f"v_min3_u32 v{vKF}, v{vKF}, v{vKF+6}, v{vKF+7}")
    e(f"v_min_u32 v{vKF}, v{vKF}, v{vKF+3}")
    e("s_nop 0")
    e(f"v_readfirstlane_b32 s{sP}, v{vKF}")
    c("plan")
    e(f"s_min_u32 s{sSH}, s{sSH}, s{sP}")
    e(f"s_mov_b32 s{sOFF}, s{sSH}")
    for b in range(8):
        e(f"s_sub_i32 s{sT}, s{sCB+b}, s{sP}")
        e(f"s_max_i32 s{sT}, s{sT}, 0")
        e(f"s_add_u32 s{sOFF+b+1}, s{sOFF+b}, s{sT}")
        e(f"s_sub_i32 s{sCB+b}, s{sP}, s{sOFF+b}")
        if b: e(f"s_addk_i32 s{sCB+b}, {512*b}")
    sU = sOFF + 8
    plan_slices(f"s{sSH}", f"s{sU}", vKF)
    vA, vE = vKF + 6, vKF + 7
    e("s_nop 0")
    e(f"v_readlane_b32 s{sU0}, v{vA}, s{sS}")
    e(f"v_readlane_b32 s{sU1}, v{vE}, s{sS}")
    vU, vCc = vKF, vKF + 1
    e(f"v_mul_u32_u24 v{vU}, {NA}, v{vLANE}")
    if EQ:
        c("late waves (4..7) get exactly len/8 units each, the remainder goes to the early waves")
        e(f"s_sub_u32 s{sT}, s{sU1}, s{sU0}")
        e(f"s_max_i32 s{sT}, s{sT}, 0")
        if EQ == 2:
            e(f"s_sub_u32 s{sT}, s{sT}, 4")
            e(f"s_max_i32 s{sT}, s{sT}, 0")
        e(f"s_lshr_b32 s{sT}, s{sT}, 3")
        e(f"s_lshl_b32 s{sT3}, s{sT}, 2")
        e(f"v_lshlrev_b32 v{vCc}, 2, v{vLANE}")
        e(f"v_add_u32 v{vCc}, s{sT3}, v{vCc}")
        e(f"v_min_u32 v{vU}, v{vU}, v{vCc}")
        e(f"s_lshl_b32 s{sT}, s{sT}, 3")
        e(f"s_add_u32 s{sT}, s{sT}, s{sU0}")
        e(f"s_cmp_lt_u32 s{sW}, 4")
        e(f"s_cselect_b32 s{sK}, s{sU1}, s{sT}")
    e(f"v_mov_b32 v{vCc}, 0")
    e(f"s_add_u32 s{sT}, s{sU0}, s{sW}")
    if NA < 8:
        e(f"s_cmp_ge_u32 s{sW}, {NA}")
        e(f"s_cselect_b32 s{sT}, 0x10000, s{sT}")
    e(f"v_add_u32 v{vU}, s{sT}, v{vU}")
    for b in range(8):
        e(f"v_cmpx_le_u32 vcc, s{sOFF+b}, v{vU}")
        e(f"v_mov_b32 v{vCc}, s{sCB+b}")
    e("s_mov_b64 exec, -1")
    e(f"v_add_u32 v{vCc}, v{vU}, v{vCc}")
    e(f"v_and_b32 v{vCc}, 4095, v{vCc}")
    e(f"v_lshlrev_b32 v{vX}, 2, v{vCc}")
    e(f"v_add_u32 v{vX}, {TAB}, v{vX}")
    e(f"ds_read_b32 v{vY}, v{vX}")
    e(f"v_and_b32 v{vINFO}, 511, v{vCc}")
    e(f"v_lshlrev_b32 v{vINFO}, 4, v{vINFO}")
    e(f"v_lshrrev_b32 v{vT}, 9, v{vCc}")
    e(f"v_cmp_gt_u32 vcc, s{sSH}, v{vU}")
    e(f"v_mov_b32 v{vT2}, 8")
    e(f"v_cmp_gt_u32 s[{sT2}:{sT2+1}], s{sK if EQ else sU1}, v{vU}")
    e(f"v_cndmask_b32 v{vT}, v{vT}, v{vT2}, vcc")
    e(f"v_lshl_or_b32 v{vINFO}, v{vT}, 16, v{vINFO}")
    e(f"v_mov_b32 v{vT2}, 0x80000000")
    e(f"s_bcnt1_i32_b64 s{sN}, s[{sT2}:{sT2+1}]")
    e("s_waitcnt lgkmcnt(0)")
    e(f"v_lshlrev_b32 v{vY}, 15, v{vY}")
    e(f"v_cndmask_b32 v{vUOFF}, v{vT2}, v{vY}, s[{sT2}:{sT2+1}]")
    e("s_nop 0")
    sRL = sC0 + 4
    for d in range(D):
        e(f"v_readlane_b32 s{sRL+d}, v{vUOFF}, {d}")
    if NSPEC:
        e("s_nop 0")
        for k in range(2 if S2 else NSPEC):
            e(f"s_cmp_lg_u32 s{sRL+k}, s{sC0+k}")
            e("s_cbranch_scc1 L_mispec")
        lab("L_specok")
    else:
        e("s_nop 1")
    for d in range(2 if S2 else NSPEC, D):
        e(f"s_add_u32 m0, s{sLDSB}, {d*4096}")
        e("s_nop 0")
        issueK(d, sRL + d)
        issueV(d, sRL + d)
    stamp(4)
    c("off critical path")
    c("launch nonce: workgroup 0 proposes its clock early; everybody reads it late through the scalar path")
    def nonce_req():
        e(f"s_memrealtime s[{sT2}:{sT2+1}]")
        e(f"v_mov_b32 v{vP+1}, 0")
        e(f"v_mov_b32 v{vREL}, 128")
        e("s_waitcnt lgkmcnt(0)")
        e(f"s_or_b32 s{sCAND}, s{sT2}, 1")
        e(f"v_mov_b32 v{vP}, s{sCAND}")
        e("s_mov_b64 exec, 1")
        e(f"global_atomic_cmpswap v{vNON}, v{vREL}, v[{vP}:{vP+1}], s[28:29] sc0 sc1")
        e("s_mov_b64 exec, -1")
    e(f"s_lshl_b32 s{sT}, s2, 3")
    e(f"s_add_u32 s{sT}, s{sT}, s{sW}")
    e(f"s_cmp_lg_u32 s{sT}, {NW}")
    e("s_cbranch_scc1 L_nonon")
    nonce_req()
    lab("L_nonon")
    e(f"s_cmp_eq_u32 s{sZQ}, 0")
    e("s_cbranch_scc0 L_zq")
    lab("L_noz")
    e(f"s_mov_b32 s{sLO}, s{sOFF}")
    e(f"s_mov_b32 s{sHI}, s{sOFF+1}")
    for b in range(1, 8):
        e(f"s_cmp_eq_u32 s{sW}, {b}")
        e(f"s_cselect_b32 s{sLO}, s{sOFF+b}, s{sLO}")
        e(f"s_cselect_b32 s{sHI}, s{sOFF+b+1}, s{sHI}")
    e(f"v_cmp_lt_u32 s[{sC0}:{sC0+1}], v{vA}, v{vE}")
    e(f"v_cmp_gt_u32 s[{sC0+2}:{sC0+3}], s{sSH}, v{vA}")
    e(f"v_cmp_gt_u32 s[{sC0+4}:{sC0+5}], s{sHI}, v{vA}")
    e(f"v_cmp_lt_u32 s[{sC0+6}:{sC0+7}], s{sLO}, v{vE}")
    e(f"s_and_b64 s[{sC0+4}:{sC0+5}], s[{sC0+4}:{sC0+5}], s[{sC0+6}:{sC0+7}]")
    e(f"s_cmp_lt_u32 s{sLO}, s{sHI}")
    e(f"s_cselect_b64 s[{sC0+4}:{sC0+5}], s[{sC0+4}:{sC0+5}], 0")
    e(f"s_or_b64 s[{sC0+2}:{sC0+3}], s[{sC0+2}:{sC0+3}], s[{sC0+4}:{sC0+5}]")
    e(f"s_and_b64 s[{sCM}:{sCM+1}], s[{sC0+2}:{sC0+3}], s[{sC0}:{sC0+1}]")
    e(f"s_bcnt1_i32_b64 s{sEXP}, s[{sCM}:{sCM+1}]")
    for G, sg in ((0, sG0), (1, sG1)):
        e(f"s_max_u32 s{sT}, s{sU0}, s{sOFF+4*G}")
        e(f"s_min_u32 s{sT3}, s{sU1}, s{sOFF+4*G+4}")
        e(f"s_cmp_lt_u32 s{sT}, s{sT3}")
        e(f"s_cselect_b32 s{sg}, 1, 0")
        e(f"s_cmp_lt_u32 s{sU0}, s{sSH}")
        e(f"s_cselect_b32 s{sg}, 1, s{sg}")
    c("epilogue setup (off the critical path)")
    e(f"v_and_b32 v{vX}, 15, v{vLANE}")
    e(f"v_lshrrev_b32 v{vT}, 4, v{vLANE}")
    e(f"s_lshl_b32 s{sT}, s{sW}, 8")
    e(f"s_add_u32 s{sT}, s{sT}, {ML}")
    e(f"v_lshlrev_b32 v{vEML}, 3, v{vX}")
    e(f"v_add_u32 v{vEML}, s{sT}, v{vEML}")
    e(f"v_mul_u32_u24 v{vEOW}, 528, v{vX}")
    e(f"v_lshl_add_u32 v{vEOW}, v{vT}, 7, v{vEOW}")
    e(f"v_add_u32 v{vEOW}, s{sLDSB}, v{vEOW}")
    e(f"v_lshlrev_b32 v{vEOA}, 8, v{vT}")
    e(f"s_lshl_b32 s{sT}, s{sW}, 2")
    e(f"v_add_u32 v{vT}, s{sT}, v{vT}")
    e(f"v_lshlrev_b32 v{vERM}, 3, v{vT}")
    e(f"v_add_u32 v{vERM}, {ML}, v{vERM}")
    e(f"v_mul_u32_u24 v{vERO0}, 528, v{vT}")
    e(f"v_lshl_add_u32 v{vERO0}, v{vX}, 5, v{vERO0}")
    e(f"v_add_u32 v{vERO1}, {4*RS}, v{vERO0}")
    e(f"v_bfe_u32 v{vT}, v{vLANE}, 2, 2")
    e(f"v_lshl_add_u32 v{vEOA}, v{vT}, 6, v{vEOA}")
    e(f"v_and_b32 v{vT}, 3, v{vLANE}")
    e(f"v_lshl_add_u32 v{vEOA}, v{vT}, 2, v{vEOA}")
    e(f"v_lshlrev_b32 v{vEX16}, 4, v{vLANE}")
    e(f"v_mov_b32 v{vENA}, {PSL+32}")
    e(f"s_mov_b32 s{sR1}, s30")
    e(f"s_mov_b32 s{sR1+1}, s31")
    e(f"s_mov_b32 s{sR1+2}, {16<<20}")
    e(f"s_mov_b32 s{sR2}, s26")
    e(f"s_mov_b32 s{sR2+1}, s27")
    e(f"s_lshl_b32 s{sT}, s{sH}, 9")
    e(f"s_add_u32 s{sT}, s{sT}, s{sW}")
    e(f"s_lshl_b32 s{sLO}, s{sT}, 12")
    e(f"s_lshl_b32 s{sOUT}, s{sW}, 13")
    e(f"s_lshl_b32 s{sT3}, s{sH}, 10")
    e(f"s_add_u32 s{sOUT}, s{sOUT}, s{sT3}")
    c("ticket operand: byte counters, 8 per head at d_debug + 16h")
    e(f"s_lshl_b32 s{sT}, s{sH}, 4")
    e(f"v_mov_b32 v{vETA}, s{sT}")
    e(f"s_lshl_b32 s{sHI}, s{sW}, 3")
    e(f"s_lshl_b64 s[{sT2}:{sT2+1}], 1, s{sHI}")
    e(f"s_cmp_lt_u32 s{sU0}, s{sSH}")
    e(f"s_cselect_b32 s{sMUL}, 1, 0")
    e(f"s_cselect_b32 s{sT2}, 0x01010101, s{sT2}")
    e(f"s_cselect_b32 s{sT2+1}, 0x01010101, s{sT2+1}")
    e(f"s_cselect_b32 s{sNTK}, s{sW}, 0")
    e(f"v_mov_b32 v{vETK}, s{sT2}")
    e(f"v_mov_b32 v{vETK+1}, s{sT2+1}")
    e(f"s_bitcmp1_b64 s[{sCM}:{sCM+1}], s{sS}")
    e(f"s_cselect_b32 s{sRD}, 1, 0")
    e(f"s_bitset0_b64 s[{sCM}:{sCM+1}], s{sS}")
    vG0 = vQ
    sGO = sOFF
    def goffs():
        e(f"s_bcnt1_i32_b64 s{sGN}, s[{sCM}:{sCM+1}]")
        e(f"s_min_u32 s{sGN}, s{sGN}, {NB}")
        for i in range(NB):
            e(f"s_ff1_i32_b64 s{sT}, s[{sCM}:{sCM+1}]")
            e(f"s_bitset0_b64 s[{sCM}:{sCM+1}], s{sT}")
            e(f"s_lshl_b32 s{sT}, s{sT}, 15")
            e(f"s_add_u32 s{sGO+NB-1-i}, s{sT}, s{sLO}")
    goffs()
    e(f"s_sub_u32 s{sEXP}, s{sEXP}, 1")
    e(f"s_lshl_b32 s{sOWN}, s{sS}, 15")
    e(f"s_add_u32 s{sOWN}, s{sOWN}, s{sLO}")
    e(f"s_mov_b32 s{sK}, 0")
    e(f"s_mov_b32 s{sKD}, {D}")
    if PR == 2:
        e(f"s_cmp_lt_u32 s{sW}, 4")
        e("s_cbranch_scc1 L_pr2")
        e("s_setprio 1")
        lab("L_pr2")
    stamp(5)
    e(f"s_cmp_eq_u32 s{sN}, 0")
    e("s_cbranch_scc1 L_loopdone")

    def group(G):
        q = vQ + G * 16; O = vO + G * 32; m = vM + G; ls = vLS + G
        for s in range(4):
            cc = "0" if s == 0 else f"v[{vS}:{vS+3}]"
            e(f"v_mfma_f32_16x16x32_bf16 v[{vS}:{vS+3}], v[{vKF+4*s}:{vKF+4*s+3}], v[{q+4*s}:{q+4*s+3}], {cc}")
        e(f"v_subrev_u32 v{vREL}, s{sT0}, v{vCT+G}")
        e(f"v_cndmask_b32 v{vREL}, 0, v{vREL}, s[{sMASK}:{sMASK+1}]")
        for i in range(4):
            e(f"v_cmp_lt_i32 s[{sC0+2*i}:{sC0+2*i+1}], {i}, v{vREL}")
        e("s_nop 1")
        for i in range(4):
            e(f"v_cndmask_b32 v{vS+i}, v{vNINF}, v{vS+i}, s[{sC0+2*i}:{sC0+2*i+1}]")
        e(f"v_max3_f32 v{vT}, v{vS}, v{vS+1}, v{vS+2}")
        e(f"v_max3_f32 v{vT}, v{vT}, v{vS+3}, v{m}")
        e(f"v_mov_b32 v{vT2}, v{vT}")
        e("s_nop 1")
        e(f"v_permlane32_swap_b32 v{vT}, v{vT2}")
        e(f"v_max_f32 v{vT}, v{vT}, v{vT2}")
        e(f"v_mov_b32 v{vT2}, v{vT}")
        e("s_nop 1")
        e(f"v_permlane16_swap_b32 v{vT}, v{vT2}")
        e(f"v_max_f32 v{vMN}, v{vT}, v{vT2}")
        e(f"v_sub_f32 v{vT}, v{m}, v{vMN}")
        e(f"v_mul_f32 v{vMC}, s{sC}, v{vMN}")
        e(f"v_mul_f32 v{vT}, s{sC}, v{vT}")
        e(f"v_exp_f32 v{vAL}, v{vT}")
        for i in range(4):
            e(f"v_fma_f32 v{vS+i}, v{vS+i}, s{sC}, -v{vMC}")
        for i in range(4):
            e(f"v_exp_f32 v{vS+i}, v{vS+i}")
        def rs(ee):
            for i in (2 * ee, 2 * ee + 1):
                e(f"v_pk_mul_f32 v[{O+2*i}:{O+2*i+1}], v[{O+2*i}:{O+2*i+1}], v[{vAL}:{vAL+1}] op_sel_hi:[1,0]")
        rs(0)
        e(f"v_cvt_pk_bf16_f32 v{vP}, v{vS}, v{vS+1}")
        e(f"v_cvt_pk_bf16_f32 v{vP+1}, v{vS+2}, v{vS+3}")
        extra = [f"v_fma_f32 v{ls}, v{ls}, v{vAL}, v{vS}", f"v_add_f32 v{vT}, v{vS+1}, v{vS+2}", f"v_add_f32 v{ls}, v{ls}, v{vS+3}", f"v_add_f32 v{ls}, v{ls}, v{vT}", f"v_mov_b32 v{m}, v{vMN}"]
        for ee in range(8):
            if ee < 7: rs(ee + 1)
            else:
                e(extra.pop(0)); e(extra.pop(0))
            e(f"v_mfma_f32_16x16x16_bf16 v[{O+4*ee}:{O+4*ee+3}], v[{vVT+2*ee}:{vVT+2*ee+1}], v[{vP}:{vP+1}], v[{O+4*ee}:{O+4*ee+3}]")
        for x in extra: e(x)

    lab("L_loop")
    for d in range(D):
        c(f"---- stage {d}")
        e(f"v_readlane_b32 s{sOFFN}, v{vUOFF}, s{sKD}")
        e(f"v_readlane_b32 s{sINFO}, v{vINFO}, s{sK}")
        e(f"s_add_u32 m0, s{sLDSB}, {d*4096}")
        if ND:
            e(f"s_sub_u32 s{sT}, s{sN}, s{sK}")
            if PR == 1:
                for lim, pr in ((6, 2), (4, 1), (2, 0)):
                    e(f"s_cmp_lg_u32 s{sT}, {lim+1}")
                    e(f"s_cbranch_scc1 L_pr{pr}_{d}")
                    e(f"s_setprio {pr}")
                    lab(f"L_pr{pr}_{d}")
            if PR == 3:
                e(f"s_cmp_lg_u32 s{sT}, 5")
                e(f"s_cbranch_scc1 L_pr_{d}")
                e(f"s_setprio 0")
                lab(f"L_pr_{d}")
            for r in range(D - 1, 0, -1):
                e(f"s_cmp_gt_u32 s{sT}, {r}")
                e(f"s_cbranch_scc1 L_w{r}_{d}")
            for r in range(0, D):
                if r: lab(f"L_w{r}_{d}")
                e(f"s_waitcnt vmcnt({8*r})")
            e(f"s_cmp_lt_u32 s{sKD}, s{sN}")
            e(f"s_cselect_b32 s{sT3}, 1, 0")
        else:
            e(f"s_waitcnt vmcnt({8*D-8})")
        if d == 0 and stamps == 1:
            e(f"s_cmp_lg_u32 s{sK}, 0")
            e(f"s_cbranch_scc1 L_nost")
            stamp(6)
            lab("L_nost")
        for s in range(4):
            e(f"ds_read_b128 v[{vKF+4*s}:{vKF+4*s+3}], v{vKA+s} offset:{d*4096}")
        vs = vVS + d * 16
        for q in range(4):
            for hi in range(2):
                sel = sPHI if hi else sPLO
                ee = 2 * q + hi
                e(f"v_perm_b32 v{vVT+2*ee}, v{vs+4+q}, v{vs+q}, s{sel}")
                e(f"v_perm_b32 v{vVT+2*ee+1}, v{vs+12+q}, v{vs+8+q}, s{sel}")
        if ND:
            e(f"s_cmp_eq_u32 s{sT3}, 0")
            e(f"s_cbranch_scc1 L_nv_{d}")
        issueV(d, sOFFN)
        if ND: lab(f"L_nv_{d}")
        e(f"s_and_b32 s{sT0}, s{sINFO}, 0xffff")
        e(f"s_lshr_b32 s{sSEG}, s{sINFO}, 16")
        e(f"s_and_b32 s{sT}, s{sSEG}, 3")
        e(f"s_lshl_b32 s{sT}, s{sT}, 2")
        e(f"s_lshl_b64 s[{sMASK}:{sMASK+1}], s[{sPAT}:{sPAT+1}], s{sT}")
        e(f"s_cmp_eq_u32 s{sSEG}, 8")
        e(f"s_cselect_b64 s[{sMASK}:{sMASK+1}], -1, s[{sMASK}:{sMASK+1}]")
        e("s_waitcnt lgkmcnt(0)")
        if ND:
            e(f"s_cmp_eq_u32 s{sT3}, 0")
            e(f"s_cbranch_scc1 L_nk_{d}")
        issueK(d, sOFFN)
        if ND: lab(f"L_nk_{d}")
        if compute:
            e(f"s_bitcmp1_b32 s{sSEG}, 2")
            e(f"s_cbranch_scc1 L_g1_{d}")
            group(0)
            e(f"s_cmp_lt_u32 s{sSEG}, 4")
            e(f"s_cbranch_scc1 L_next_{d}")
            lab(f"L_g1_{d}")
            group(1)
            lab(f"L_next_{d}")
        e(f"s_add_u32 s{sK}, s{sK}, 1")
        e(f"s_add_u32 s{sKD}, s{sKD}, 1")
        e(f"s_cmp_ge_u32 s{sK}, s{sN}")
        if d < D - 1:
            e("s_cbranch_scc1 L_loopdone")
        else:
            e("s_cbranch_scc0 L_loop")
    lab("L_loopdone")
    stamp(7)
    if not epilogue:
        e("s_branch L_end")
    c("reduce l across g, write m/l and O to LDS")
    vACC2 = vKF; vTK = vETK
    e(f"v_mov_b32 v{vT2}, v{vLS}")
    e(f"v_mov_b32 v{vT}, v{vLS+1}")
    e(f"v_mov_b32 v{vS}, v{vM}")
    e(f"v_permlane32_swap_b32 v{vLS}, v{vT2}")
    e(f"v_permlane32_swap_b32 v{vLS+1}, v{vT}")
    e(f"v_add_f32 v{vLS}, v{vLS}, v{vT2}")
    e(f"v_add_f32 v{vLS+1}, v{vLS+1}, v{vT}")
    e(f"v_mov_b32 v{vT2}, v{vLS}")
    e(f"v_mov_b32 v{vT}, v{vLS+1}")
    e(f"v_mov_b32 v{vS+2}, v{vM+1}")
    e("s_waitcnt vmcnt(0)")
    e(f"v_permlane16_swap_b32 v{vLS}, v{vT2}")
    e(f"v_permlane16_swap_b32 v{vLS+1}, v{vT}")
    e(f"v_add_f32 v{vS+1}, v{vLS}, v{vT2}")
    e(f"v_add_f32 v{vS+3}, v{vLS+1}, v{vT}")
    for G, sg in ((0, sG0), (1, sG1)):
        e(f"s_cmp_eq_u32 s{sg}, 0")
        e(f"s_cbranch_scc1 L_skipw{G}")
        for ee in range(8):
            e(f"ds_write_b128 v{vEOW}, v[{vO+G*32+4*ee}:{vO+G*32+4*ee+3}] offset:{G*16*528+ee*16}")
        e(f"ds_write_b64 v{vEML}, v[{vS+2*G}:{vS+2*G+1}] offset:{128*G}")
        lab(f"L_skipw{G}")
    e(f"s_cmp_eq_u32 s{sW}, {NW}")
    e("s_cbranch_scc1 L_nonget")
    lab("L_nonon2")
    if DRY >= 0:
        e(f"s_cmp_eq_u32 s{sW}, {DRY}")
        e("s_cbranch_scc1 L_dry")
        lab("L_dryret2")
    e("s_waitcnt lgkmcnt(0)")
    e("s_barrier")
    if CUT == 1: e("s_branch L_end")
    e(f"s_cmp_eq_u32 s{sRD}, 0")
    e("s_cbranch_scc1 L_end")
    if CUT == 2: e("s_branch L_notk")
    e(f"s_cmp_lg_u32 s{sNTK}, 0")
    e("s_cbranch_scc1 L_notk")
    e(f"s_mov_b64 exec, 1")
    e(f"global_atomic_add_x2 v[{vTK}:{vTK+1}], v{vETA}, v[{vTK}:{vTK+1}], s[28:29] sc0 sc1")
    e(f"s_mov_b64 exec, -1")
    lab("L_notk")
    stamp(8)
    vML = vKF
    vOO = vO
    e(f"ds_read_b32 v{vS+1}, v{vENA}")
    for ws in range(8):
        e(f"ds_read_b64 v[{vML+2*ws}:{vML+2*ws+1}], v{vERM} offset:{ws*256}")
    for ws in range(8):
        va = vERO0 if ws < 4 else vERO1
        off = (ws & 3) * RS
        e(f"ds_read_b128 v[{vOO+8*ws}:{vOO+8*ws+3}], v{va} offset:{off}")
        e(f"ds_read_b128 v[{vOO+8*ws+4}:{vOO+8*ws+7}], v{va} offset:{off+16}")
        if ws == 2: e("s_waitcnt lgkmcnt(6)")
    vACC = vVS
    vPB = vVT
    gmap = [0, 1, 2, 4, 5, 6, 8, 9]
    vMM, vLL, vW = vS + 2, vS + 3, vLS
    e(f"v_max3_f32 v{vMM}, v{vML}, v{vML+2}, v{vML+4}")
    e(f"v_max3_f32 v{vMM}, v{vMM}, v{vML+6}, v{vML+8}")
    e(f"v_max3_f32 v{vMM}, v{vMM}, v{vML+10}, v{vML+12}")
    e(f"v_max_f32 v{vMM}, v{vMM}, v{vML+14}")
    e(f"v_mul_f32 v{vMM}, s{sC}, v{vMM}")
    for ws in range(8):
        e(f"v_fma_f32 v{vML+2*ws}, v{vML+2*ws}, s{sC}, -v{vMM}")
    for ws in range(8):
        e(f"v_exp_f32 v{vML+2*ws}, v{vML+2*ws}")
    e(f"v_readfirstlane_b32 s{sNON}, v{vS+1}")
    e(f"v_mul_f32 v{vLL}, v{vML}, v{vML+1}")
    for ws in range(1, 8):
        e(f"v_fmac_f32 v{vLL}, v{vML+2*ws}, v{vML+2*ws+1}")
    e(f"v_mov_b32 v{vPB+3}, v{vS+1}")
    e(f"v_max_f32 v{vAL}, 0x{f2u(1e-30):08x}, v{vLL}")
    e(f"v_log_f32 v{vLL}, v{vAL}")
    e(f"v_rcp_f32 v{vAL}, v{vAL}")
    e(f"v_mov_b32 v{vPB+7}, v{vS+1}")
    e(f"v_mov_b32 v{vPB+11}, v{vS+1}")
    e(f"v_add_f32 v{vPB+10}, v{vMM}, v{vLL}")
    for ws in range(8):
        e(f"v_mul_f32 v{vML+2*ws}, v{vML+2*ws}, v{vAL}")
    e("s_waitcnt lgkmcnt(0)")
    for i in range(4):
        e(f"v_pk_mul_f32 v[{vACC+2*i}:{vACC+2*i+1}], v[{vOO+2*i}:{vOO+2*i+1}], v[{vML}:{vML+1}] op_sel_hi:[1,0]")
    for ws in range(1, 7):
        for i in range(4):
            e(f"v_pk_fma_f32 v[{vACC+2*i}:{vACC+2*i+1}], v[{vOO+8*ws+2*i}:{vOO+8*ws+2*i+1}], v[{vML+2*ws}:{vML+2*ws+1}], v[{vACC+2*i}:{vACC+2*i+1}] op_sel_hi:[1,0,1]")
    for i in range(8):
        e(f"v_fma_f32 v{vPB+gmap[i]}, v{vOO+56+i}, v{vML+14}, v{vACC+i}")
    stamp(9)
    if CUT == 2: e("s_branch L_end")
    def publish():
        for g in range(3):
            e(f"buffer_store_dwordx4 v[{vPB+4*g}:{vPB+4*g+3}], v{vEX16}, s[{sR1}:{sR1+3}], s{sOWN} offen offset:{1024*g} {hs}")
    if UP: publish()
    e(f"s_cmp_lg_u32 s{sMUL}, 0")
    e("s_cbranch_scc1 L_multi")
    e("s_waitcnt vmcnt(3)" if UP else "s_waitcnt vmcnt(0)")
    lab("L_havetk")
    e(f"v_readfirstlane_b32 s{sT2}, v{vTK}")
    e(f"v_readfirstlane_b32 s{sT2+1}, v{vTK+1}")
    e(f"v_mov_b32 v{vW}, 1.0")
    e(f"s_lshr_b64 s[{sT2}:{sT2+1}], s[{sT2}:{sT2+1}], s{sHI}")
    e(f"s_and_b32 s{sT}, s{sT2}, 0xff")
    e(f"s_cmp_eq_u32 s{sT}, s{sEXP}")
    e("s_cbranch_scc0 L_end" if UP else "s_cbranch_scc0 L_publish")
    if CUT == 3: e("s_branch L_end")
    e(f"s_cmp_eq_u32 s{sGN}, 0")
    e("s_cbranch_scc1 L_final")
    c("last arriver: gather other partials (validated by tag); slots NB-N..NB-1 are live")
    def ladder(tag):
        def rec(lo, hi):
            if lo == hi:
                e(f"s_branch {tag}_{NB-lo}")
                return
            mid = (lo + hi + 1) // 2
            l = f"{tag}_t{lo}_{hi}"
            e(f"s_cmp_ge_u32 s{sGN}, {mid}")
            if mid == hi:
                e(f"s_cbranch_scc1 {tag}_{NB-hi}")
                rec(lo, mid - 1)
            else:
                e(f"s_cbranch_scc1 {l}")
                rec(lo, mid - 1)
                lab(l)
                rec(mid, hi)
        rec(1, NB)
    if SL:
        vTmin, vTmax = vT, vT2
        vW2 = vLS + 1
        lab("L_gather")
        ladder("L_gs")
        order = list(range(1, NB + 1))
        order.remove(8); order.append(8)
        for n in order:
            js = list(range(NB - n, NB))
            lab(f"L_gs_{NB-n}")
            for j in js:
                b0 = vG0 + j * 12
                e(f"buffer_load_dwordx4 v[{b0+8}:{b0+11}], v{vEX16}, s[{sR1}:{sR1+3}], s{sGO+j} offen offset:2048 {hl}")
            for j in js:
                b0 = vG0 + j * 12
                for g in range(2):
                    e(f"buffer_load_dwordx4 v[{b0+4*g}:{b0+4*g+3}], v{vEX16}, s[{sR1}:{sR1+3}], s{sGO+j} offen offset:{1024*g} {hl}")
            e(f"v_mov_b32 v{vMN}, v{vPB+10}")
            e(f"v_mov_b32 v{vTmin}, s{sNON}")
            e(f"v_mov_b32 v{vTmax}, s{sNON}")
            e(f"s_waitcnt vmcnt({2*n})")
            k = 0
            while k < n:
                b0 = vG0 + js[k] * 12
                if k + 1 < n:
                    b1 = b0 + 12
                    e(f"v_max3_f32 v{vMN}, v{vMN}, v{b0+10}, v{b1+10}")
                    e(f"v_min3_u32 v{vTmin}, v{vTmin}, v{b0+11}, v{b1+11}")
                    e(f"v_max3_u32 v{vTmax}, v{vTmax}, v{b0+11}, v{b1+11}")
                    k += 2
                else:
                    e(f"v_max_f32 v{vMN}, v{vMN}, v{b0+10}")
                    e(f"v_min_u32 v{vTmin}, v{vTmin}, v{b0+11}")
                    e(f"v_max_u32 v{vTmax}, v{vTmax}, v{b0+11}")
                    k += 1
            e(f"v_cmp_ne_u32 vcc, v{vTmin}, v{vTmax}")
            e(f"v_sub_f32 v{vAL}, v{vPB+10}, v{vMN}")
            e(f"v_exp_f32 v{vAL}, v{vAL}")
            e(f"s_cbranch_vccnz L_gs_{NB-n}")
            for j in js:
                b0 = vG0 + j * 12
                e(f"v_sub_f32 v{b0+10}, v{b0+10}, v{vMN}")
            for j in js:
                b0 = vG0 + j * 12
                e(f"v_exp_f32 v{b0+10}, v{b0+10}")
            for i in range(8):
                e(f"v_mul_f32 v{vACC2+i}, v{vAL}, v{vPB+gmap[i]}")
            e(f"v_mul_f32 v{vW2}, v{vAL}, v{vW}")
            for j in js:
                b0 = vG0 + j * 12
                e(f"v_add_f32 v{vW2}, v{vW2}, v{b0+10}")
                e(f"v_pk_fma_f32 v[{vACC2+6}:{vACC2+7}], v[{b0+8}:{b0+9}], v[{b0+10}:{b0+11}], v[{vACC2+6}:{vACC2+7}] op_sel_hi:[1,0,1]")
            e(f"v_rcp_f32 v{vAL}, v{vW2}")
            for j in js:
                b0 = vG0 + j * 12
                e(f"s_waitcnt vmcnt({2*(NB-1-j)})")
                e(f"v_min3_u32 v{vTmin}, v{vTmin}, v{b0+3}, v{b0+7}")
                e(f"v_max3_u32 v{vTmax}, v{vTmax}, v{b0+3}, v{b0+7}")
                e(f"v_pk_fma_f32 v[{vACC2}:{vACC2+1}], v[{b0}:{b0+1}], v[{b0+10}:{b0+11}], v[{vACC2}:{vACC2+1}] op_sel_hi:[1,0,1]")
                e(f"v_fmac_f32 v{vACC2+2}, v{b0+10}, v{b0+2}")
                e(f"v_fmac_f32 v{vACC2+3}, v{b0+10}, v{b0+4}")
                e(f"v_fmac_f32 v{vACC2+4}, v{b0+10}, v{b0+5}")
                e(f"v_fmac_f32 v{vACC2+5}, v{b0+10}, v{b0+6}")
            e(f"v_cmp_ne_u32 vcc, v{vTmin}, v{vTmax}")
            e(f"s_cmp_lg_u64 s[{sCM}:{sCM+1}], 0")
            e("s_nop 0")
            e(f"s_cbranch_vccnz L_gs_{NB-n}")
            if n == NB: e("s_cbranch_scc1 L_gather2")
            if n != order[-1]: e("s_branch L_fin2")
    else:
        lab("L_gather")
        stamp(11)
        ladder("L_ga")
        for j in range(NB):
            b0 = vG0 + j * 12
            lab(f"L_ga_{j}")
            e(f"buffer_load_dwordx4 v[{b0+8}:{b0+11}], v{vEX16}, s[{sR1}:{sR1+3}], s{sGO+j} offen offset:2048 {hl}")
        ladder("L_gb")
        for j in range(NB):
            b0 = vG0 + j * 12
            lab(f"L_gb_{j}")
            for g in range(2):
                e(f"buffer_load_dwordx4 v[{b0+4*g}:{b0+4*g+3}], v{vEX16}, s[{sR1}:{sR1+3}], s{sGO+j} offen offset:{1024*g} {hl}")
        vTmin, vTmax = vT, vT2
        vW2 = vLS + 1
        e(f"v_mov_b32 v{vMN}, v{vPB+10}")
        e(f"v_mov_b32 v{vTmin}, s{sNON}")
        e(f"v_mov_b32 v{vTmax}, s{sNON}")
        ladder("L_gc")
        for j in range(NB):
            b0 = vG0 + j * 12
            lab(f"L_gc_{j}")
            c("entry j: all lse granules landed when <= 2*(NB-j) loads remain; later entries are no-ops") if j == 0 else None
            e(f"s_waitcnt vmcnt({2*(NB-j)})")
            e(f"s_branch L_gd_{j}")
        for j in range(NB):
            b0 = vG0 + j * 12
            lab(f"L_gd_{j}")
            e(f"v_max_f32 v{vMN}, v{vMN}, v{b0+10}")
            e(f"v_min_u32 v{vTmin}, v{vTmin}, v{b0+11}")
            e(f"v_max_u32 v{vTmax}, v{vTmax}, v{b0+11}")
        stamp(12)
        if EC: e(f"v_cmp_ne_u32 vcc, v{vTmin}, v{vTmax}")
        e(f"v_sub_f32 v{vAL}, v{vPB+10}, v{vMN}")
        e(f"v_exp_f32 v{vAL}, v{vAL}")
        e("s_cbranch_vccnz L_retry" if EC else "s_nop 0")
        for i in range(8):
            e(f"v_mul_f32 v{vACC2+i}, v{vAL}, v{vPB+gmap[i]}")
        e(f"v_mul_f32 v{vW2}, v{vAL}, v{vW}")
        ladder("L_ge")
        for j in range(NB):
            b0 = vG0 + j * 12
            lab(f"L_ge_{j}")
            e(f"v_sub_f32 v{b0+10}, v{b0+10}, v{vMN}")
            e(f"v_exp_f32 v{b0+10}, v{b0+10}")
            e(f"s_waitcnt vmcnt({2*(NB-1-j)})")
            e(f"v_min3_u32 v{vTmin}, v{vTmin}, v{b0+3}, v{b0+7}")
            e(f"v_max3_u32 v{vTmax}, v{vTmax}, v{b0+3}, v{b0+7}")
            e(f"v_add_f32 v{vW2}, v{vW2}, v{b0+10}")
            e(f"v_pk_fma_f32 v[{vACC2}:{vACC2+1}], v[{b0}:{b0+1}], v[{b0+10}:{b0+11}], v[{vACC2}:{vACC2+1}] op_sel_hi:[1,0,1]")
            e(f"v_fmac_f32 v{vACC2+2}, v{b0+10}, v{b0+2}")
            e(f"v_fmac_f32 v{vACC2+3}, v{b0+10}, v{b0+4}")
            e(f"v_fmac_f32 v{vACC2+4}, v{b0+10}, v{b0+5}")
            e(f"v_fmac_f32 v{vACC2+5}, v{b0+10}, v{b0+6}")
            e(f"v_pk_fma_f32 v[{vACC2+6}:{vACC2+7}], v[{b0+8}:{b0+9}], v[{b0+10}:{b0+11}], v[{vACC2+6}:{vACC2+7}] op_sel_hi:[1,0,1]")
        e(f"v_cmp_ne_u32 vcc, v{vTmin}, v{vTmax}")
        e(f"v_rcp_f32 v{vAL}, v{vW2}")
        e(f"s_cmp_lg_u64 s[{sCM}:{sCM+1}], 0")
        e("s_cbranch_vccnz L_retry")
        e("s_cbranch_scc1 L_gather2")
    lab("L_fin2")
    for i in range(4):
        e(f"v_pk_mul_f32 v[{vACC2+2*i}:{vACC2+2*i+1}], v[{vACC2+2*i}:{vACC2+2*i+1}], v[{vAL}:{vAL+1}] op_sel_hi:[1,0]")
    for r in range(4):
        e(f"v_cvt_pk_bf16_f32 v{vACC2+r}, v{vACC2+r}, v{vACC2+4+r}")
    if CUT == 4: e("s_branch L_end")
    if TR:
        a = vACC2; b = vACC2 + 4; cc = vACC2 + 8
        sw1 = "quad_perm:[1,0,3,2] row_mask:0xf bank_mask:0xf"
        sw2 = "quad_perm:[2,3,0,1] row_mask:0xf bank_mask:0xf"
        e("s_mov_b32 vcc_lo, 0x55555555")
        e("s_mov_b32 vcc_hi, 0x55555555")
        e(f"v_cndmask_b32_dpp v{b}, v{a+1}, v{a}, vcc {sw1}")
        e(f"v_cndmask_b32_dpp v{b+2}, v{a+3}, v{a+2}, vcc {sw1}")
        e("s_not_b64 vcc, vcc")
        e(f"v_cndmask_b32_dpp v{b+1}, v{a}, v{a+1}, vcc {sw1}")
        e(f"v_cndmask_b32_dpp v{b+3}, v{a+2}, v{a+3}, vcc {sw1}")
        e("s_mov_b32 vcc_lo, 0x33333333")
        e("s_mov_b32 vcc_hi, 0x33333333")
        e(f"v_cndmask_b32_dpp v{cc}, v{b+2}, v{b}, vcc {sw2}")
        e(f"v_cndmask_b32_dpp v{cc+1}, v{b+3}, v{b+1}, vcc {sw2}")
        e("s_not_b64 vcc, vcc")
        e(f"v_cndmask_b32_dpp v{cc+2}, v{b}, v{b+2}, vcc {sw2}")
        e(f"v_cndmask_b32_dpp v{cc+3}, v{b+1}, v{b+3}, vcc {sw2}")
        e(f"buffer_store_dwordx4 v[{cc}:{cc+3}], v{vEX16}, s[{sR2}:{sR2+3}], s{sOUT} offen {op}")
    else:
        for r in range(4):
            e(f"buffer_store_dword v{vACC2+r}, v{vEOA}, s[{sR2}:{sR2+3}], s{sOUT} offen offset:{16*r} {op}")
    if DRY >= 0: e("s_cbranch_execz L_dryret")
    stamp(13)
    if stamps: e("s_waitcnt vmcnt(0)")
    stamp(14)
    lab("L_end")
    stampflush()
    lab("L_end2")
    e("s_endpgm")
    c("---- side paths")
    lab("L_retry")
    c("a partial of a workgroup that already holds a ticket is still in flight: read again (bounded)")
    e(f"s_add_u32 s{sK}, s{sK}, 1")
    e(f"s_cmp_lt_u32 s{sK}, 0x200000")
    e("s_cbranch_scc1 L_gather")
    e("s_branch L_end")
    if DRY >= 0:
        c("instruction warm-up: one early wave walks the tail code with every lane off (valid SRDs and addresses)")
        sv = sC0
        lab("L_dry")
        e(f"s_mov_b32 s{sv}, s{sMUL}")
        e(f"s_mov_b32 s{sv+1}, s{sEXP}")
        e(f"s_mov_b64 s[{sv+2}:{sv+3}], s[{sCM}:{sCM+1}]")
        e(f"s_mov_b32 s{sv+4}, s{sGN}")
        e(f"s_mov_b32 s{sMUL}, 0")
        e(f"s_mov_b32 s{sEXP}, 1")
        e(f"s_mov_b64 s[{sCM}:{sCM+1}], 0")
        e(f"s_max_u32 s{sGN}, s{sGN}, 1")
        e("s_mov_b64 exec, 0")
        e("s_branch L_notk")
        lab("L_dryret")
        e("s_mov_b64 exec, -1")
        e(f"s_mov_b32 s{sMUL}, s{sv}")
        e(f"s_mov_b32 s{sEXP}, s{sv+1}")
        e(f"s_mov_b64 s[{sCM}:{sCM+1}], s[{sv+2}:{sv+3}]")
        e(f"s_mov_b32 s{sGN}, s{sv+4}")
        e("s_branch L_dryret2")
    lab("L_nonget")
    e(f"s_load_dword s{sT}, s[28:29], 128")
    e("s_waitcnt lgkmcnt(0)")
    e(f"s_cmp_lg_u32 s{sT}, 0")
    e("s_cbranch_scc1 L_nonput")
    nonce_req()
    e("s_waitcnt vmcnt(0)")
    e(f"v_readfirstlane_b32 s{sT}, v{vNON}")
    e(f"s_cmp_eq_u32 s{sT}, 0")
    e(f"s_cselect_b32 s{sT}, s{sCAND}, s{sT}")
    lab("L_nonput")
    e(f"v_mov_b32 v{vT}, s{sT}")
    e(f"ds_write_b32 v{vENA}, v{vT}")
    e("s_branch L_nonon2")
    lab("L_publish")
    e(f"s_cmp_lg_u32 s{sMUL}, 0")
    e("s_cbranch_scc1 L_end")
    publish()
    stamp(10)
    e("s_branch L_end")
    lab("L_final")
    for i in range(8):
        e(f"v_mov_b32 v{vACC2+i}, v{vPB+gmap[i]}")
    e(f"v_mov_b32 v{vAL}, 1.0")
    e("s_branch L_fin2")
    lab("L_multi")
    c("wave 0 took the tickets of all 8 batches: share them through LDS")
    if not UP: publish()
    e(f"v_mov_b32 v{vS}, {PSL+40}")
    e(f"s_cmp_lg_u32 s{sW}, 0")
    e("s_cbranch_scc1 L_multi2")
    e("s_waitcnt vmcnt(3)")
    e("s_mov_b64 exec, 1")
    e(f"ds_write_b64 v{vS}, v[{vTK}:{vTK+1}]")
    e("s_mov_b64 exec, -1")
    e("s_waitcnt lgkmcnt(0)")
    lab("L_multi2")
    e("s_barrier")
    e(f"ds_read_b64 v[{vTK}:{vTK+1}], v{vS}")
    e("s_waitcnt lgkmcnt(0)")
    e("s_branch L_havetk")
    lab("L_gather2")
    for i in range(8):
        e(f"v_mov_b32 v{vPB+gmap[i]}, v{vACC2+i}")
    e(f"v_mov_b32 v{vPB+10}, v{vMN}")
    e(f"v_mov_b32 v{vW}, v{vW2}")
    goffs()
    e("s_branch L_gather")
    if NSPEC:
        lab("L_mispec")
        stamp(15)
        e("s_waitcnt vmcnt(0)")
        for k in range(2 if S2 else NSPEC):
            e(f"s_add_u32 m0, s{sLDSB}, {k*4096}")
            e("s_nop 0")
            issueK(k, sRL + k)
            issueV(k, sRL + k)
        e("s_branch L_specok")
    lab("L_zq")
    c("ctx<=0: reference softmax is uniform over all positions -> zero those Q rows")
    for b in range(8):
        e(f"s_bitcmp1_b32 s{sZQ}, {b}")
        e(f"s_cbranch_scc0 L_zq{b}")
        e(f"s_lshl_b64 exec, s[{sPAT}:{sPAT+1}], {4*(b&3)}")
        for i in range(16):
            e(f"v_mov_b32 v{vQ+(b>>2)*16+i}, 0")
        lab(f"L_zq{b}")
    e("s_mov_b64 exec, -1")
    e("s_branch L_noz")
    o.append('.section .rodata,"a"')
    o.append(".p2align 6")
    o.append(f".amdhsa_kernel {NAME}_kernel")
    o.append(f"  .amdhsa_next_free_vgpr {NV}")
    o.append("  .amdhsa_next_free_sgpr 102")
    o.append(f"  .amdhsa_accum_offset {(NV+3)//4*4}")
    o.append("  .amdhsa_group_segment_fixed_size 0")
    o.append("  .amdhsa_kernarg_size 64")
    o.append("  .amdhsa_user_sgpr_count 2")
    o.append("  .amdhsa_user_sgpr_kernarg_segment_ptr 1")
    o.append("  .amdhsa_system_sgpr_workgroup_id_x 1")
    o.append(".end_amdhsa_kernel")
    return "\n".join(o) + "\n"

if __name__ == "__main__":
    kw = {}
    out = sys.argv[1]
    for a in sys.argv[2:]:
        k, v = a.split("=")
        kw[k] = v if k in ("ldpol", "hs", "hl", "op", "GIVE", "DST") else (float(v) if k.startswith("PHI") else int(v))
    open(out, "w").write(gen(**kw))
```

```python
import sys, math, struct
NAME = "standalone__paged_block_table_kv_radixattention__decode"
def f2u(f): return struct.unpack("<I", struct.pack("<f", f))[0]

def gen(D=2, stamps=0, compute=1, ldpol="nt", epilogue=1, NSPEC=1, PHI=0.89, NB=12, TD=0, X3=0, X7=0, HX=1, EB=1, PHI2=0.83, XA=1, ND=1, NW=1, NA=8, op="", CUT=0, TR=1, PT=0, TP=-1, EC=1, UP=1, SL=0, EQ=1, SPF=0, S2=0, TRY=0, PR=0, NON=1, DRY=-1, GIVE="", DST="", hs="sc0 sc1", hl="sc0 sc1"):
    o = []
    def e(s): o.append("    " + s)
    def lab(s): o.append(s + ":")
    def c(s): o.append("    ; " + s)

    RS = 16896
    ML = 8 * RS
    TAB = ML + 2048
    QB = TAB + 16384
    PSL = QB + 8192
    LDS = PSL + 64
    KVB = 75497472
    CSC = math.log2(math.e) / math.sqrt(128.0)

    ectx = [8192 - ((i + 1) * 2654435761) % 2048 for i in range(8)]
    eP = 256
    enb = [(x + 15) // 16 for x in ectx]
    eS = eP
    eoff = [eS]
    for b in range(8): eoff.append(eoff[-1] + enb[b] - eP)
    ePv = eoff[8] - eS
    eU = eoff[8]

    sW, sH, sS = 3, 4, 5
    sK, sKD, sN = 6, 7, 8
    sP, sSH, sNSL, sU0, sU1 = 9, 10, 11, 12, 13
    sC = 14
    sLDSB = 15
    sCTX = 32
    sKR, sVR, sR1, sR2 = 40, 44, 48, 52
    sOFF = 56
    sCB = 65
    sT0, sSEG, sINFO, sOFFN = 73, 74, 75, 76
    sPLO, sPHI = 77, 78
    sT = 79
    sMASK = 80
    sPAT = 82
    sC0 = 84
    sCM, sLO, sHI = 92, 94, 95
    sEXP = 17
    sT2 = 96
    sG0, sG1 = 98, 99
    sT3 = 100
    sST = 101
    sZQ = 16
    sSP = 22
    vLANE = 1
    vKD = 2; vVO = 6; vKA = 8
    vUOFF, vINFO = 12, 13
    vCT = 14; vNINF = 16; vM = 17; vLS = 19
    vT, vAL, vT2 = 21, 22, 24
    vMC, vREL, vMN = 25, 26, 27
    vP = 28; vX, vY = 30, 31
    vS = 32; vKF = 36; vVT = 52; vQ = 68; vO = 100; vVS = 164
    NV = max(vVS + 16 * D, vQ + NB * 12)
    vNON = 0
    sCAND = 18
    sNON = 19
    vE0 = (NV + 1) & ~1
    vETK, vEML, vEOW, vERM, vERO0, vERO1, vEOA, vETA, vEX16, vENA = vE0, vE0+2, vE0+3, vE0+4, vE0+5, vE0+6, vE0+7, vE0+8, vE0+9, vE0+10
    NV = vE0 + 11
    sOWN, sOUT, sMUL, sNTK, sRD, sGN = 32, 33, 34, 35, 36, 37
    vSX, vSY = NV, NV + 1
    if stamps: NV += 2

    def stamp(idx):
        if not stamps: return
        if stamps == 2 and idx not in (0, 7, 14): return
        e(f"s_memrealtime s[{sT2}:{sT2+1}]")
        e(f"s_waitcnt lgkmcnt(0)")
        e(f"v_writelane_b32 v{vSX}, s{sT2}, {idx}")
    def stampflush():
        if not stamps: return
        e(f"s_lshl_b32 s{sST}, s2, 3")
        e(f"s_add_u32 s{sST}, s{sST}, s{sW}")
        e(f"s_lshl_b32 s{sST}, s{sST}, 6")
        e(f"s_add_u32 s{sST}, s{sST}, {301989888 - (1<<20)}")
        e(f"s_mov_b64 exec, 0xffff")
        e(f"v_lshlrev_b32 v{vSY}, 2, v{vLANE}")
        e(f"v_add_u32 v{vSY}, s{sST}, v{vSY}")
        e(f"global_store_dword v{vSY}, v{vSX}, s[30:31]")

    def plan_slices(S, U, a):
        a0, a1, a2, a3, a4, a5, vA, vE = [a + i for i in range(8)]
        e(f"v_cvt_f32_u32 v{a0}, {U}")
        e(f"v_cvt_f32_u32 v{a1}, {S}")
        e(f"v_cvt_f32_u32 v{a2}, s{sNSL}")
        e(f"v_rcp_f32 v{a3}, v{a0}")
        e(f"v_mul_f32 v{a1}, 0x{f2u(1.0/PHI):08x}, v{a1}")
        e(f"v_mul_f32 v{a1}, v{a1}, v{a2}")
        e(f"v_mul_f32 v{a1}, v{a1}, v{a3}")
        e(f"v_ceil_f32 v{a1}, v{a1}")
        e(f"v_min_f32 v{a1}, v{a1}, v{a2}")
        e(f"v_mov_b32 v{a3}, 0x{f2u(PHI-1.0):08x}")
        if PHI2 != 1.0:
            e(f"v_subrev_f32 v{a4}, 0x{f2u(32.0):08x}, v{a2}")
            e(f"v_max_f32 v{a4}, 0, v{a4}")
            e(f"v_mul_f32 v{a4}, 0x{f2u(PHI2-1.0):08x}, v{a4}")
            e(f"v_add_f32 v{a2}, v{a2}, v{a4}")
        e(f"v_fma_f32 v{a2}, v{a1}, v{a3}, v{a2}")
        e(f"v_rcp_f32 v{a2}, v{a2}")
        e(f"v_cvt_f32_u32 v{a4}, v{vLANE}")
        e(f"v_mul_f32 v{a2}, v{a2}, v{a0}")
        e(f"v_add_f32 v{a5}, 1.0, v{a4}")
        for x, d in ((a4, vA), (a5, vE)):
            e(f"v_min_f32 v{d}, v{x}, v{a1}")
            e(f"v_fma_f32 v{d}, v{d}, v{a3}, v{x}")
            if PHI2 != 1.0:
                e(f"v_subrev_f32 v{x}, 0x{f2u(32.0):08x}, v{x}")
                e(f"v_max_f32 v{x}, 0, v{x}")
                e(f"v_mul_f32 v{x}, 0x{f2u(PHI2-1.0):08x}, v{x}")
                e(f"v_add_f32 v{d}, v{d}, v{x}")
            e(f"v_fma_f32 v{d}, v{d}, v{a2}, 0.5")
            e(f"v_cvt_u32_f32 v{d}, v{d}")
        e(f"v_add_u32 v{a4}, 1, v{vLANE}")
        e(f"v_mov_b32 v{a0}, {U}")
        e(f"v_cmp_le_u32 vcc, s{sNSL}, v{a4}")
        e(f"v_min_u32 v{vA}, v{vA}, v{a0}")
        e(f"v_min_u32 v{vE}, v{vE}, v{a0}")
        e(f"v_cndmask_b32 v{vE}, v{vE}, v{a0}, vcc")
        e(f"v_cmp_le_u32 vcc, s{sNSL}, v{vLANE}")
        e("s_nop 1")
        e(f"v_cndmask_b32 v{vA}, v{vA}, v{a0}, vcc")

    def issueV(d, soff):
        for i in range(4):
            e(f"buffer_load_dwordx4 v[{vVS+d*16+i*4}:{vVS+d*16+i*4+3}], v{vVO+(i>>1)}, s[{sVR}:{sVR+3}], s{soff} offen offset:{(i&1)*2048} {ldpol}")
    def issueK(d, soff):
        for i in range(4):
            e(f"buffer_load_dwordx4 v{vKD+i}, s[{sKR}:{sKR+3}], s{soff} offen offset:{i*1024} {ldpol} lds")

    hdr = open(f"cdna_kernels/{NAME}.s.ref").read().split("\n")
    for ln in hdr:
        if ln.startswith("; @launch"): break
        o.append(ln)
    o.append(f"; @launch grid=(256,1,1) block=(512,1,1) lds={LDS}")
    o.append('.amdgcn_target "amdgcn-amd-amdhsa--gfx950"')
    o.append(".text")
    for ln in """
 Paged GQA decode attention with a shared-prefix (radix) fast path.  One workgroup = one kv head x one
 contiguous slice of the unit list; unit = one 16-token block.  The list is built at run time from
 block_table / ctx_lens: [blocks whose physical id is equal in all 8 rows: read once, 32 query rows]
 ++ [per batch: remaining blocks below ctx_len].  Any table / ctx is handled (prefix length may be 0..512).
 Per unit: K via LDS-DMA (xor swizzle) -> S^T = K Q^T (16x16x32), mask, online softmax (true running max),
 V loaded row-major, transposed with v_perm, O^T += V^T P^T (16x16x16).  Waves merge through LDS, the
 workgroups of a (batch, head) hand partials {O/l, lse} over through d_ws: every 16-byte granule carries a
 per-launch tag (agreed through d_debug), a ticket in d_debug elects the last arriver, which merges them.
 The first unit of every wave is prefetched from a predicted address while the real plan is computed; the
 prediction is compared with the real plan and re-issued when it differs (speed hint only).
""".strip("\n").split("\n"): o.append(";" + ln)
    o.append(f".globl {NAME}_kernel")
    o.append(".p2align 8")
    o.append(f".type {NAME}_kernel,@function")
    lab(f"{NAME}_kernel")
    e("s_cmp_ge_u32 s2, 256")
    e("s_cbranch_scc1 L_end2")
    if stamps: e(f"v_mov_b32 v{vSX}, 0")
    stamp(0)
    e("s_load_dwordx16 s[16:31], s[0:1], 0")
    if PR in (1, 3): e("s_setprio 3")
    e(f"v_lshrrev_b32 v{vT}, 6, v0")
    e(f"v_and_b32 v{vLANE}, 63, v0")
    e(f"v_readfirstlane_b32 s{sW}, v{vT}")
    e(f"s_and_b32 s{sH}, s2, 7")
    if HX: e(f"s_xor_b32 s{sH}, s{sH}, {HX}")
    e(f"s_lshr_b32 s{sS}, s2, 3")
    if GIVE:
        give = [int(ch) for ch in GIVE]; dst = [int(ch) for ch in DST]
        tot = [0, 0]; base = [0]*8
        for cx in range(8):
            base[cx] = tot[dst[cx]]; tot[dst[cx]] += give[cx]
        nsl = [32 - give[cx] for cx in range(8)]
        nsl[0] = 32 + tot[0]; nsl[4] = 32 + tot[1]
        t1 = sum((nsl[cx] - 28) << (4*cx) for cx in range(8))
        t2 = sum(((base[cx] << 1) | dst[cx]) << (4*cx) for cx in range(8))
        e(f"s_and_b32 s{sT}, s2, 7")
        e(f"s_lshl_b32 s{sT}, s{sT}, 2")
        e(f"s_lshr_b32 s{sNSL}, 0x{t1:08x}, s{sT}")
        e(f"s_and_b32 s{sNSL}, s{sNSL}, 15")
        e(f"s_add_u32 s{sNSL}, s{sNSL}, 28")
        e(f"s_cmp_ge_u32 s{sS}, s{sNSL}")
        e(f"s_cbranch_scc0 L_map2")
        e(f"s_lshr_b32 s{sT}, 0x{t2:08x}, s{sT}")
        e(f"s_sub_u32 s{sS}, s{sS}, s{sNSL}")
        e(f"s_bfe_u32 s{sT3}, s{sT}, 0x30001")
        e(f"s_add_u32 s{sS}, s{sS}, s{sT3}")
        e(f"s_add_u32 s{sS}, s{sS}, 32")
        e(f"s_bitcmp1_b32 s{sT}, 0")
        e(f"s_cselect_b32 s{sH}, 5, 1")
        e(f"s_cselect_b32 s{sNSL}, {nsl[4]}, {nsl[0]}")
        lab("L_map2")
    elif XA:
        e(f"s_and_b32 s{sT}, s{sH}, 3")
        e(f"s_cmp_eq_u32 s{sT}, 1")
        e(f"s_cselect_b32 s{sNSL}, 35, 31")
        e(f"s_cmp_ge_u32 s{sS}, s{sNSL}")
        e(f"s_cbranch_scc0 L_map2")
        e(f"s_max_u32 s{sT}, s{sT}, 1")
        e(f"s_add_u32 s{sS}, s{sT}, 31")
        e(f"s_and_b32 s{sH}, s{sH}, 4")
        e(f"s_or_b32 s{sH}, s{sH}, 1")
        e(f"s_mov_b32 s{sNSL}, 35")
        lab("L_map2")
    else:
        e(f"s_mov_b32 s{sNSL}, 32")
    for hh, X in ((3, X3), (7, X7)):
        if not X: continue
        e(f"s_cmp_eq_u32 s{sH}, {hh}")
        e(f"s_cselect_b32 s{sNSL}, {32-X}, s{sNSL}")
    if X3 or X7:
        e(f"s_cmp_ge_u32 s{sS}, s{sNSL}")
        e(f"s_cbranch_scc0 L_map")
        e(f"s_sub_u32 s{sS}, s{sS}, s{sNSL}")
        e(f"s_add_u32 s{sS}, s{sS}, 32")
        e(f"s_sub_u32 s{sH}, s{sH}, 2")
        lab("L_map")
    for hh, X in ((1, X3), (5, X7)):
        if not X: continue
        e(f"s_cmp_eq_u32 s{sH}, {hh}")
        e(f"s_cselect_b32 s{sNSL}, {32+X}, s{sNSL}")
    vRow, vG = vVT, vVT + 1
    t0, t1, t2 = vVT + 2, vVT + 3, vVT + 4
    vQO = vVT + 5
    e(f"v_and_b32 v{vRow}, 15, v{vLANE}")
    e(f"v_lshrrev_b32 v{vG}, 4, v{vLANE}")
    e(f"v_lshlrev_b32 v{vX}, 2, v0")
    e(f"s_lshl_b32 s{sT}, s{sH}, 8")
    e(f"s_mul_i32 s{sLDSB}, s{sW}, {RS}")
    e(f"v_lshlrev_b32 v{vVO}, 13, v{vG}")
    e(f"v_lshl_add_u32 v{vVO}, v{vRow}, 4, v{vVO}")
    e(f"v_add_u32 v{vVO}, s{sT}, v{vVO}")
    e(f"v_add_u32 v{vVO+1}, 0x1000, v{vVO}")
    e(f"v_xor_b32 v{t0}, v{vG}, v{vRow}")
    e(f"v_lshlrev_b32 v{t1}, 11, v{vG}")
    e(f"v_add_u32 v{t1}, s{sT}, v{t1}")
    for i in range(4):
        if i: e(f"v_xor_b32 v{t2}, {4*i}, v{t0}")
        e(f"v_lshl_add_u32 v{vKD+i}, v{t2 if i else t0}, 4, v{t1}")
        if i: e(f"v_add_u32 v{vKD+i}, {i*8192-i*1024}, v{vKD+i}")
    e(f"v_add_u32 v{vY}, 0x1000, v{vX}")
    e(f"v_add_u32 v{vT}, 0x2000, v{vX}")
    e(f"v_add_u32 v{vT2}, 0x3000, v{vX}")
    e(f"s_and_b32 s{sT3}, s{sW}, 3")
    e(f"s_lshl_b32 s{sT3}, s{sT3}, 2")
    e(f"v_xor_b32 v{vQO}, s{sT3}, v{t0}")
    e(f"v_lshlrev_b32 v{vQO}, 4, v{vQO}")
    e(f"v_lshl_add_u32 v{vQO}, v{vG}, 8, v{vQO}")
    e(f"s_lshl_b32 s{sLO}, s{sW}, 13")
    e(f"s_lshl_b32 s{sT3}, s{sH}, 10")
    e(f"s_add_u32 s{sLO}, s{sLO}, s{sT3}")
    e(f"s_lshl_b32 s{sHI}, s{sW}, 10")
    e(f"s_add_u32 s{sHI}, s{sHI}, {QB}")
    for r, n in ((sR1, 16384), (sR2, 65536), (sKR, KVB), (sVR, KVB)):
        e(f"s_mov_b32 s{r+2}, {n}")
        e(f"s_mov_b32 s{r+3}, 0x00020000")
    if NSPEC:
        c("predicted first units (prefetch hint only)")
        assert XA and not GIVE
        def model(nsl):
            m = min(math.ceil(eS * nsl / (PHI * eU)), nsl)
            L = eU / (nsl + (PHI2 - 1.0) * max(nsl - 32, 0) + (PHI - 1.0) * m)
            st = []
            for x in range(nsl):
                v = (x + (PHI - 1.0) * min(x, m) + (PHI2 - 1.0) * max(x - 32, 0)) * L + 0.5
                assert abs(v - round(v)) > 0.004, (nsl, x, v)
                st.append(int(v))
            A1 = round(PHI * L * 65536); A2 = round(L * 65536); A3 = round((PHI2 - 1.0) * L * 65536)
            for x in range(nsl):
                assert (A1 * min(x, m) + A2 * max(x - m, 0) + A3 * max(x - 32, 0) + 32768) >> 16 == st[x], (nsl, x)
            return m, A1, A2, A3
        m1, A1n, A2n, _ = model(31); m2, A1s, A2s, A3s = model(35)
        e(f"s_cmp_eq_u32 s{sNSL}, 35")
        e(f"s_cselect_b32 s{sK}, {m2}, {m1}")
        e(f"s_mov_b32 s{sKD}, {A1n - A2n}")
        e(f"s_cselect_b32 s{sKD}, {A1s - A2s}, s{sKD}")
        e(f"s_mov_b32 s{sN}, {A2n}")
        e(f"s_cselect_b32 s{sN}, {A2s}, s{sN}")
        e(f"s_min_u32 s{sK}, s{sK}, s{sS}")
        e(f"s_mul_i32 s{sK}, s{sK}, s{sKD}")
        e(f"s_mul_i32 s{sN}, s{sN}, s{sS}")
        e(f"s_sub_i32 s{sT}, s{sS}, 32")
        e(f"s_max_i32 s{sT}, s{sT}, 0")
        e(f"s_mul_i32 s{sT}, s{sT}, {A3s}")
        e(f"s_add_u32 s{sK}, s{sK}, s{sN}")
        e(f"s_add_u32 s{sT}, s{sT}, s{sK}")
        e(f"s_add_u32 s{sT}, s{sT}, 32768")
        e(f"s_lshr_b32 s{sT}, s{sT}, 16")
        e(f"s_add_u32 s{sT}, s{sT}, s{sW}")
        if S2: e(f"s_add_u32 s{sC0+2}, s{sT}, 8")
        for k in range(NSPEC):
            if k: e(f"s_add_u32 s{sT}, s{sT}, {NA}")
            e(f"s_mov_b32 s{sT3}, 0")
            for b in range(1, 8):
                e(f"s_cmp_ge_u32 s{sT}, {eoff[b]}")
                e(f"s_cselect_b32 s{sT3}, {eP + 256*b - eoff[b]}, s{sT3}")
            e(f"s_add_u32 s{sT3}, s{sT3}, s{sT}")
            e(f"s_lshl_b32 s{sC0+k}, s{sT3}, 15")
            if NA < 8:
                e(f"s_cmp_ge_u32 s{sW}, {NA}")
                e(f"s_cselect_b32 s{sC0+k}, 0x80000000, s{sC0+k}")
    if SPF:
        e(f"s_mov_b32 m0, s{sLDSB}")
        e("s_waitcnt lgkmcnt(0)")
        stamp(1)
        e(f"s_mov_b32 s{sKR}, s18")
        e(f"s_mov_b32 s{sKR+1}, s19")
        e(f"s_mov_b32 s{sVR}, s20")
        e(f"s_mov_b32 s{sVR+1}, s21")
        issueK(0, sC0)
        if SPF == 1: issueV(0, sC0)
        e(f"s_mov_b32 m0, s{sHI}")
        e(f"s_mov_b32 s{sR1}, s22")
        e(f"s_mov_b32 s{sR1+1}, s23")
        e(f"s_load_dwordx8 s[{sCTX}:{sCTX+7}], s[24:25], 0")
        vTB = vKF
        for b in range(8):
            va = [vX, vY, vT, vT2][b >> 1]
            e(f"buffer_load_dword v{vTB+b}, v{va}, s[{sR1}:{sR1+3}], 0 offen offset:{(b&1)*2048}")
        e(f"s_mov_b32 s{sR2}, s16")
        e(f"s_mov_b32 s{sR2+1}, s17")
        e(f"buffer_load_dwordx4 v{vQO}, s[{sR2}:{sR2+3}], s{sLO} offen lds")
        if SPF == 2:
            if EB: e("s_barrier")
            issueV(0, sC0)
    else:
        e(f"s_mov_b32 m0, s{sHI}")
        e("s_waitcnt lgkmcnt(0)")
        stamp(1)
        e(f"s_mov_b32 s{sR1}, s22")
        e(f"s_mov_b32 s{sR1+1}, s23")
        e(f"s_load_dwordx8 s[{sCTX}:{sCTX+7}], s[24:25], 0")
        vTB = vKF
        for b in range(8):
            va = [vX, vY, vT, vT2][b >> 1]
            e(f"buffer_load_dword v{vTB+b}, v{va}, s[{sR1}:{sR1+3}], 0 offen offset:{(b&1)*2048}")
        e(f"s_mov_b32 s{sR2}, s16")
        e(f"s_mov_b32 s{sR2+1}, s17")
        e(f"s_mov_b32 s{sKR}, s18")
        e(f"s_mov_b32 s{sKR+1}, s19")
        e(f"buffer_load_dwordx4 v{vQO}, s[{sR2}:{sR2+3}], s{sLO} offen lds")
        e(f"s_mov_b32 s{sVR}, s20")
        e(f"s_mov_b32 s{sVR+1}, s21")
        if EB: e("s_barrier")
        for k in range(NSPEC):
            e(f"s_add_u32 m0, s{sLDSB}, {k*4096}")
            e("s_nop 0")
            issueK(k, sC0 + k)
            issueV(k, sC0 + k)
    if S2:
        e(f"s_mov_b32 s{sT3}, 0")
        for b in range(1, 8):
            e(f"s_cmp_ge_u32 s{sC0+2}, {eoff[b]}")
            e(f"s_cselect_b32 s{sT3}, {eP + 256*b - eoff[b]}, s{sT3}")
        e(f"s_add_u32 s{sT3}, s{sT3}, s{sC0+2}")
        e(f"s_lshl_b32 s{sC0+1}, s{sT3}, 15")
        e(f"s_add_u32 m0, s{sLDSB}, 4096")
    c("constants")
    e(f"s_mov_b32 s{sC}, 0x{f2u(CSC):08x}")
    e(f"s_mov_b32 s{sPLO}, 0x05040100")
    e(f"s_mov_b32 s{sPHI}, 0x07060302")
    e(f"s_mov_b32 s{sPAT}, 0x000F000F")
    e(f"s_mov_b32 s{sPAT+1}, 0x000F000F")
    e(f"v_lshlrev_b32 v{t1}, 8, v{vRow}")
    e(f"v_add_u32 v{t1}, s{sLDSB}, v{t1}")
    for s in range(4):
        if s: e(f"v_xor_b32 v{t2}, {4*s}, v{t0}")
        e(f"v_lshl_add_u32 v{vKA+s}, v{t2 if s else t0}, 4, v{t1}")
    e(f"v_mov_b32 v{vNINF}, 0xff800000")
    e(f"v_mov_b32 v{vM}, 0xf1800000")
    e(f"v_mov_b32 v{vM+1}, 0xf1800000")
    e(f"v_mov_b32 v{vLS}, 0")
    e(f"v_mov_b32 v{vLS+1}, 0")
    for i in range(64):
        e(f"v_mov_b32 v{vO+i}, 0")
    e(f"v_add_u32 v{vX}, {TAB}, v{vX}")
    c("ctx scalars")
    e("s_waitcnt lgkmcnt(0)")
    e(f"s_mov_b32 s{sSH}, 0")
    e(f"s_mov_b32 s{sZQ}, 0")
    for b in range(8):
        r = sCTX + b
        e(f"s_cmp_lt_i32 s{r}, 1")
        e(f"s_cselect_b32 s{r}, 8192, s{r}")
        e(f"s_cselect_b32 s{sT}, {1<<b}, 0")
        e(f"s_or_b32 s{sZQ}, s{sZQ}, s{sT}")
        e(f"s_min_i32 s{r}, s{r}, 8192")
        e(f"s_add_u32 s{sCB+b}, s{r}, 15")
        e(f"s_lshr_b32 s{sCB+b}, s{sCB+b}, 4")
        e(f"s_max_u32 s{sSH}, s{sSH}, s{sCB+b}")
    for b in range(4):
        e(f"s_lshl_b64 exec, s[{sPAT}:{sPAT+1}], {4*b}")
        e(f"v_mov_b32 v{vCT}, s{sCTX+b}")
        e(f"v_mov_b32 v{vCT+1}, s{sCTX+4+b}")
    e("s_mov_b64 exec, -1")
    e(f"v_lshlrev_b32 v{t1}, 2, v{vG}")
    e(f"v_sub_u32 v{vCT}, v{vCT}, v{t1}")
    e(f"v_sub_u32 v{vCT+1}, v{vCT+1}, v{t1}")
    e(f"s_lshl_b32 s{sT}, s{sW}, 2")
    e(f"s_add_u32 s{sT}, s{sT}, {PSL}")
    e(f"v_mov_b32 v{vY}, s{sT}")
    e(f"s_lshl_b32 s{sT}, s{sW}, 6")
    c("table arrived?")
    e(f"s_waitcnt vmcnt({1+[8*NSPEC,0,4][SPF]})")
    stamp(2)
    for b in range(1, 8):
        e(f"v_xor_b32 v{vTB+8+b}, v{vTB}, v{vTB+b}")
    e(f"v_or3_b32 v{vTB+9}, v{vTB+9}, v{vTB+10}, v{vTB+11}")
    e(f"v_or3_b32 v{vTB+12}, v{vTB+12}, v{vTB+13}, v{vTB+14}")
    e(f"v_or3_b32 v{vTB+9}, v{vTB+9}, v{vTB+12}, v{vTB+15}")
    e(f"v_cmp_ne_u32 vcc, 0, v{vTB+9}")
    for b in range(0, 8, 2):
        e(f"ds_write2st64_b32 v{vX}, v{vTB+b}, v{vTB+b+1} offset0:{b*8} offset1:{(b+1)*8}")
    e(f"s_ff1_i32_b64 s{sP}, vcc")
    e(f"s_add_u32 s{sP}, s{sP}, s{sT}")
    e(f"s_cmp_eq_u64 vcc, 0")
    e(f"s_cselect_b32 s{sP}, 512, s{sP}")
    e(f"v_mov_b32 v{vT}, s{sP}")
    e(f"ds_write_b32 v{vY}, v{vT}")
    e(f"v_mov_b32 v{vY}, {PSL}")
    e(f"s_waitcnt vmcnt({[8*NSPEC,0,4][SPF]}) lgkmcnt(0)")
    e("s_barrier")
    stamp(3)
    if S2 == 1:
        issueK(1, sC0 + 1)
        issueV(1, sC0 + 1)
    e(f"ds_read_b128 v[{vKF}:{vKF+3}], v{vY}")
    e(f"ds_read_b128 v[{vKF+4}:{vKF+7}], v{vY} offset:16")
    c("Q fragments from LDS")
    e(f"s_sub_u32 s{sT}, {QB}, s{sLDSB}")
    for s in range(4):
        e(f"v_add_u32 v{vS+s}, s{sT}, v{vKA+s}")
    for G in range(2):
        for s in range(4):
            e(f"ds_read_b128 v[{vQ+G*16+4*s}:{vQ+G*16+4*s+3}], v{vS+s} offset:{G*4096}")
    if S2 == 2:
        issueK(1, sC0 + 1)
        issueV(1, sC0 + 1)
    e("s_waitcnt lgkmcnt(8)")
    e(f"v_min3_u32 v{vKF}, v{vKF}, v{vKF+1}, v{vKF+2}")
    e(f"v_min3_u32 v{vKF+3}, v{vKF+3}, v{vKF+4}, v{vKF+5}")
    e(f"v_min3_u32 v{vKF}, v{vKF}, v{vKF+6}, v{vKF+7}")
    e(f"v_min_u32 v{vKF}, v{vKF}, v{vKF+3}")
    e("s_nop 0")
    e(f"v_readfirstlane_b32 s{sP}, v{vKF}")
    c("plan")
    e(f"s_min_u32 s{sSH}, s{sSH}, s{sP}")
    e(f"s_mov_b32 s{sOFF}, s{sSH}")
    for b in range(8):
        e(f"s_sub_i32 s{sT}, s{sCB+b}, s{sP}")
        e(f"s_max_i32 s{sT}, s{sT}, 0")
        e(f"s_add_u32 s{sOFF+b+1}, s{sOFF+b}, s{sT}")
        e(f"s_sub_i32 s{sCB+b}, s{sP}, s{sOFF+b}")
        if b: e(f"s_addk_i32 s{sCB+b}, {512*b}")
    sU = sOFF + 8
    plan_slices(f"s{sSH}", f"s{sU}", vKF)
    vA, vE = vKF + 6, vKF + 7
    e("s_nop 0")
    e(f"v_readlane_b32 s{sU0}, v{vA}, s{sS}")
    e(f"v_readlane_b32 s{sU1}, v{vE}, s{sS}")
    vU, vCc = vKF, vKF + 1
    e(f"v_mul_u32_u24 v{vU}, {NA}, v{vLANE}")
    if EQ:
        c("late waves (4..7) get exactly len/8 units each, the remainder goes to the early waves")
        e(f"s_sub_u32 s{sT}, s{sU1}, s{sU0}")
        e(f"s_max_i32 s{sT}, s{sT}, 0")
        if EQ == 2:
            e(f"s_sub_u32 s{sT}, s{sT}, 4")
            e(f"s_max_i32 s{sT}, s{sT}, 0")
        e(f"s_lshr_b32 s{sT}, s{sT}, 3")
        e(f"s_lshl_b32 s{sT3}, s{sT}, 2")
        e(f"v_lshlrev_b32 v{vCc}, 2, v{vLANE}")
        e(f"v_add_u32 v{vCc}, s{sT3}, v{vCc}")
        e(f"v_min_u32 v{vU}, v{vU}, v{vCc}")
        e(f"s_lshl_b32 s{sT}, s{sT}, 3")
        e(f"s_add_u32 s{sT}, s{sT}, s{sU0}")
        e(f"s_cmp_lt_u32 s{sW}, 4")
        e(f"s_cselect_b32 s{sK}, s{sU1}, s{sT}")
    e(f"v_mov_b32 v{vCc}, 0")
    e(f"s_add_u32 s{sT}, s{sU0}, s{sW}")
    if NA < 8:
        e(f"s_cmp_ge_u32 s{sW}, {NA}")
        e(f"s_cselect_b32 s{sT}, 0x10000, s{sT}")
    e(f"v_add_u32 v{vU}, s{sT}, v{vU}")
    for b in range(8):
        e(f"v_cmpx_le_u32 vcc, s{sOFF+b}, v{vU}")
        e(f"v_mov_b32 v{vCc}, s{sCB+b}")
    e("s_mov_b64 exec, -1")
    e(f"v_add_u32 v{vCc}, v{vU}, v{vCc}")
    e(f"v_and_b32 v{vCc}, 4095, v{vCc}")
    e(f"v_lshlrev_b32 v{vX}, 2, v{vCc}")
    e(f"v_add_u32 v{vX}, {TAB}, v{vX}")
    e(f"ds_read_b32 v{vY}, v{vX}")
    e(f"v_and_b32 v{vINFO}, 511, v{vCc}")
    e(f"v_lshlrev_b32 v{vINFO}, 4, v{vINFO}")
    e(f"v_lshrrev_b32 v{vT}, 9, v{vCc}")
    e(f"v_cmp_gt_u32 vcc, s{sSH}, v{vU}")
    e(f"v_mov_b32 v{vT2}, 8")
    e(f"v_cmp_gt_u32 s[{sT2}:{sT2+1}], s{sK if EQ else sU1}, v{vU}")
    e(f"v_cndmask_b32 v{vT}, v{vT}, v{vT2}, vcc")
    e(f"v_lshl_or_b32 v{vINFO}, v{vT}, 16, v{vINFO}")
    e(f"v_mov_b32 v{vT2}, 0x80000000")
    e(f"s_bcnt1_i32_b64 s{sN}, s[{sT2}:{sT2+1}]")
    e("s_waitcnt lgkmcnt(0)")
    e(f"v_lshlrev_b32 v{vY}, 15, v{vY}")
    e(f"v_cndmask_b32 v{vUOFF}, v{vT2}, v{vY}, s[{sT2}:{sT2+1}]")
    e("s_nop 0")
    if TP >= 0:
        c("touch every block this wave will read once: warms address translation ahead of the stream")
        if TP < 8:
            e(f"s_cmp_lg_u32 s{sW}, {TP}")
            e("s_cbranch_scc1 L_ntp")
        e(f"buffer_load_dword v{vEOA}, v{vUOFF}, s[{sKR}:{sKR+3}], 0 offen {ldpol}")
        e(f"buffer_load_dword v{vEOA}, v{vUOFF}, s[{sVR}:{sVR+3}], 0 offen {ldpol}")
        lab("L_ntp")
    sRL = sC0 + 4
    for d in range(D):
        e(f"v_readlane_b32 s{sRL+d}, v{vUOFF}, {d}")
    if NSPEC:
        e("s_nop 0")
        for k in range(2 if S2 else NSPEC):
            e(f"s_cmp_lg_u32 s{sRL+k}, s{sC0+k}")
            e("s_cbranch_scc1 L_mispec")
        lab("L_specok")
    else:
        e("s_nop 1")
    for d in range(2 if S2 else NSPEC, D):
        e(f"s_add_u32 m0, s{sLDSB}, {d*4096}")
        e("s_nop 0")
        issueK(d, sRL + d)
        issueV(d, sRL + d)
    stamp(4)
    c("off critical path")
    c("launch nonce: workgroup 0 proposes its clock early; everybody reads it late through the scalar path")
    def nonce_req():
        e(f"s_memrealtime s[{sT2}:{sT2+1}]")
        e(f"v_mov_b32 v{vP+1}, 0")
        e(f"v_mov_b32 v{vREL}, 128")
        e("s_waitcnt lgkmcnt(0)")
        e(f"s_or_b32 s{sCAND}, s{sT2}, 1")
        e(f"v_mov_b32 v{vP}, s{sCAND}")
        e("s_mov_b64 exec, 1")
        e(f"global_atomic_cmpswap v{vNON}, v{vREL}, v[{vP}:{vP+1}], s[28:29] sc0 sc1")
        e("s_mov_b64 exec, -1")
    e(f"s_lshl_b32 s{sT}, s2, 3")
    e(f"s_add_u32 s{sT}, s{sT}, s{sW}")
    e(f"s_cmp_lg_u32 s{sT}, {NW}")
    e("s_cbranch_scc1 L_nonon")
    nonce_req()
    lab("L_nonon")
    e(f"s_cmp_eq_u32 s{sZQ}, 0")
    e("s_cbranch_scc0 L_zq")
    lab("L_noz")
    e(f"s_mov_b32 s{sLO}, s{sOFF}")
    e(f"s_mov_b32 s{sHI}, s{sOFF+1}")
    for b in range(1, 8):
        e(f"s_cmp_eq_u32 s{sW}, {b}")
        e(f"s_cselect_b32 s{sLO}, s{sOFF+b}, s{sLO}")
        e(f"s_cselect_b32 s{sHI}, s{sOFF+b+1}, s{sHI}")
    e(f"v_cmp_lt_u32 s[{sC0}:{sC0+1}], v{vA}, v{vE}")
    e(f"v_cmp_gt_u32 s[{sC0+2}:{sC0+3}], s{sSH}, v{vA}")
    e(f"v_cmp_gt_u32 s[{sC0+4}:{sC0+5}], s{sHI}, v{vA}")
    e(f"v_cmp_lt_u32 s[{sC0+6}:{sC0+7}], s{sLO}, v{vE}")
    e(f"s_and_b64 s[{sC0+4}:{sC0+5}], s[{sC0+4}:{sC0+5}], s[{sC0+6}:{sC0+7}]")
    e(f"s_cmp_lt_u32 s{sLO}, s{sHI}")
    e(f"s_cselect_b64 s[{sC0+4}:{sC0+5}], s[{sC0+4}:{sC0+5}], 0")
    e(f"s_or_b64 s[{sC0+2}:{sC0+3}], s[{sC0+2}:{sC0+3}], s[{sC0+4}:{sC0+5}]")
    e(f"s_and_b64 s[{sCM}:{sCM+1}], s[{sC0+2}:{sC0+3}], s[{sC0}:{sC0+1}]")
    e(f"s_bcnt1_i32_b64 s{sEXP}, s[{sCM}:{sCM+1}]")
    for G, sg in ((0, sG0), (1, sG1)):
        e(f"s_max_u32 s{sT}, s{sU0}, s{sOFF+4*G}")
        e(f"s_min_u32 s{sT3}, s{sU1}, s{sOFF+4*G+4}")
        e(f"s_cmp_lt_u32 s{sT}, s{sT3}")
        e(f"s_cselect_b32 s{sg}, 1, 0")
        e(f"s_cmp_lt_u32 s{sU0}, s{sSH}")
        e(f"s_cselect_b32 s{sg}, 1, s{sg}")
    c("epilogue setup (off the critical path)")
    e(f"v_and_b32 v{vX}, 15, v{vLANE}")
    e(f"v_lshrrev_b32 v{vT}, 4, v{vLANE}")
    e(f"s_lshl_b32 s{sT}, s{sW}, 8")
    e(f"s_add_u32 s{sT}, s{sT}, {ML}")
    e(f"v_lshlrev_b32 v{vEML}, 3, v{vX}")
    e(f"v_add_u32 v{vEML}, s{sT}, v{vEML}")
    e(f"v_mul_u32_u24 v{vEOW}, 528, v{vX}")
    e(f"v_lshl_add_u32 v{vEOW}, v{vT}, 7, v{vEOW}")
    e(f"v_add_u32 v{vEOW}, s{sLDSB}, v{vEOW}")
    if not TR: e(f"v_lshlrev_b32 v{vEOA}, 8, v{vT}")
    e(f"s_lshl_b32 s{sT}, s{sW}, 2")
    e(f"v_add_u32 v{vT}, s{sT}, v{vT}")
    e(f"v_lshlrev_b32 v{vERM}, 3, v{vT}")
    e(f"v_add_u32 v{vERM}, {ML}, v{vERM}")
    e(f"v_mul_u32_u24 v{vERO0}, 528, v{vT}")
    e(f"v_lshl_add_u32 v{vERO0}, v{vX}, 5, v{vERO0}")
    e(f"v_add_u32 v{vERO1}, {4*RS}, v{vERO0}")
    if not TR:
        e(f"v_bfe_u32 v{vT}, v{vLANE}, 2, 2")
        e(f"v_lshl_add_u32 v{vEOA}, v{vT}, 6, v{vEOA}")
        e(f"v_and_b32 v{vT}, 3, v{vLANE}")
        e(f"v_lshl_add_u32 v{vEOA}, v{vT}, 2, v{vEOA}")
    e(f"v_lshlrev_b32 v{vEX16}, 4, v{vLANE}")
    e(f"v_mov_b32 v{vENA}, {PSL+32}")
    e(f"s_mov_b32 s{sR1}, s30")
    e(f"s_mov_b32 s{sR1+1}, s31")
    e(f"s_mov_b32 s{sR1+2}, {16<<20}")
    e(f"s_mov_b32 s{sR2}, s26")
    e(f"s_mov_b32 s{sR2+1}, s27")
    e(f"s_lshl_b32 s{sT}, s{sH}, 9")
    e(f"s_add_u32 s{sT}, s{sT}, s{sW}")
    e(f"s_lshl_b32 s{sLO}, s{sT}, 12")
    e(f"s_lshl_b32 s{sOUT}, s{sW}, 13")
    e(f"s_lshl_b32 s{sT3}, s{sH}, 10")
    e(f"s_add_u32 s{sOUT}, s{sOUT}, s{sT3}")
    c("ticket operand: byte counters, 8 per head at d_debug + 16h")
    e(f"s_lshl_b32 s{sT}, s{sH}, 4")
    e(f"v_mov_b32 v{vETA}, s{sT}")
    e(f"s_lshl_b32 s{sHI}, s{sW}, 3")
    e(f"s_lshl_b64 s[{sT2}:{sT2+1}], 1, s{sHI}")
    e(f"s_cmp_lt_u32 s{sU0}, s{sSH}")
    e(f"s_cselect_b32 s{sMUL}, 1, 0")
    e(f"s_cselect_b32 s{sT2}, 0x01010101, s{sT2}")
    e(f"s_cselect_b32 s{sT2+1}, 0x01010101, s{sT2+1}")
    e(f"s_cselect_b32 s{sNTK}, s{sW}, 0")
    e(f"v_mov_b32 v{vETK}, s{sT2}")
    e(f"v_mov_b32 v{vETK+1}, s{sT2+1}")
    e(f"s_bitcmp1_b64 s[{sCM}:{sCM+1}], s{sS}")
    e(f"s_cselect_b32 s{sRD}, 1, 0")
    e(f"s_bitset0_b64 s[{sCM}:{sCM+1}], s{sS}")
    vG0 = vQ
    sGO = sOFF
    def goffs():
        e(f"s_bcnt1_i32_b64 s{sGN}, s[{sCM}:{sCM+1}]")
        e(f"s_min_u32 s{sGN}, s{sGN}, {NB}")
        for i in range(NB):
            e(f"s_ff1_i32_b64 s{sT}, s[{sCM}:{sCM+1}]")
            e(f"s_bitset0_b64 s[{sCM}:{sCM+1}], s{sT}")
            e(f"s_lshl_b32 s{sT}, s{sT}, 15")
            e(f"s_add_u32 s{sGO+NB-1-i}, s{sT}, s{sLO}")
    goffs()
    e(f"s_sub_u32 s{sEXP}, s{sEXP}, 1")
    e(f"s_lshl_b32 s{sOWN}, s{sS}, 15")
    e(f"s_add_u32 s{sOWN}, s{sOWN}, s{sLO}")
    if PT:
        e(f"s_cmp_eq_u32 s{sRD}, 0")
        e("s_cbranch_scc1 L_npt")
        for g in range(3):
            e(f"buffer_store_dwordx4 v[{vO}:{vO+3}], v{vEX16}, s[{sR1}:{sR1+3}], s{sOWN} offen offset:{1024*g} {hs}")
        lab("L_npt")
    e(f"s_mov_b32 s{sK}, 0")
    e(f"s_mov_b32 s{sKD}, {D}")
    if PR == 2:
        e(f"s_cmp_lt_u32 s{sW}, 4")
        e("s_cbranch_scc1 L_pr2")
        e("s_setprio 1")
        lab("L_pr2")
    stamp(5)
    e(f"s_cmp_eq_u32 s{sN}, 0")
    e("s_cbranch_scc1 L_loopdone")

    def group(G):
        q = vQ + G * 16; O = vO + G * 32; m = vM + G; ls = vLS + G
        for s in range(4):
            cc = "0" if s == 0 else f"v[{vS}:{vS+3}]"
            e(f"v_mfma_f32_16x16x32_bf16 v[{vS}:{vS+3}], v[{vKF+4*s}:{vKF+4*s+3}], v[{q+4*s}:{q+4*s+3}], {cc}")
        e(f"v_subrev_u32 v{vREL}, s{sT0}, v{vCT+G}")
        e(f"v_cndmask_b32 v{vREL}, 0, v{vREL}, s[{sMASK}:{sMASK+1}]")
        for i in range(4):
            e(f"v_cmp_lt_i32 s[{sC0+2*i}:{sC0+2*i+1}], {i}, v{vREL}")
        e("s_nop 1")
        for i in range(4):
            e(f"v_cndmask_b32 v{vS+i}, v{vNINF}, v{vS+i}, s[{sC0+2*i}:{sC0+2*i+1}]")
        e(f"v_max3_f32 v{vT}, v{vS}, v{vS+1}, v{vS+2}")
        e(f"v_max3_f32 v{vT}, v{vT}, v{vS+3}, v{m}")
        e(f"v_mov_b32 v{vT2}, v{vT}")
        e("s_nop 1")
        e(f"v_permlane32_swap_b32 v{vT}, v{vT2}")
        e(f"v_max_f32 v{vT}, v{vT}, v{vT2}")
        e(f"v_mov_b32 v{vT2}, v{vT}")
        e("s_nop 1")
        e(f"v_permlane16_swap_b32 v{vT}, v{vT2}")
        e(f"v_max_f32 v{vMN}, v{vT}, v{vT2}")
        e(f"v_sub_f32 v{vT}, v{m}, v{vMN}")
        e(f"v_mul_f32 v{vMC}, s{sC}, v{vMN}")
        e(f"v_mul_f32 v{vT}, s{sC}, v{vT}")
        e(f"v_exp_f32 v{vAL}, v{vT}")
        for i in range(4):
            e(f"v_fma_f32 v{vS+i}, v{vS+i}, s{sC}, -v{vMC}")
        for i in range(4):
            e(f"v_exp_f32 v{vS+i}, v{vS+i}")
        def rs(ee):
            for i in (2 * ee, 2 * ee + 1):
                e(f"v_pk_mul_f32 v[{O+2*i}:{O+2*i+1}], v[{O+2*i}:{O+2*i+1}], v[{vAL}:{vAL+1}] op_sel_hi:[1,0]")
        rs(0)
        e(f"v_cvt_pk_bf16_f32 v{vP}, v{vS}, v{vS+1}")
        e(f"v_cvt_pk_bf16_f32 v{vP+1}, v{vS+2}, v{vS+3}")
        extra = [f"v_fma_f32 v{ls}, v{ls}, v{vAL}, v{vS}", f"v_add_f32 v{vT}, v{vS+1}, v{vS+2}", f"v_add_f32 v{ls}, v{ls}, v{vS+3}", f"v_add_f32 v{ls}, v{ls}, v{vT}", f"v_mov_b32 v{m}, v{vMN}"]
        for ee in range(8):
            if ee < 7: rs(ee + 1)
            else:
                e(extra.pop(0)); e(extra.pop(0))
            e(f"v_mfma_f32_16x16x16_bf16 v[{O+4*ee}:{O+4*ee+3}], v[{vVT+2*ee}:{vVT+2*ee+1}], v[{vP}:{vP+1}], v[{O+4*ee}:{O+4*ee+3}]")
        for x in extra: e(x)

    lab("L_loop")
    for d in range(D):
        c(f"---- stage {d}")
        e(f"v_readlane_b32 s{sOFFN}, v{vUOFF}, s{sKD}")
        e(f"v_readlane_b32 s{sINFO}, v{vINFO}, s{sK}")
        e(f"s_add_u32 m0, s{sLDSB}, {d*4096}")
        if ND:
            e(f"s_sub_u32 s{sT}, s{sN}, s{sK}")
            if PR == 1:
                for lim, pr in ((6, 2), (4, 1), (2, 0)):
                    e(f"s_cmp_lg_u32 s{sT}, {lim+1}")
                    e(f"s_cbranch_scc1 L_pr{pr}_{d}")
                    e(f"s_setprio {pr}")
                    lab(f"L_pr{pr}_{d}")
            if PR == 3:
                e(f"s_cmp_lg_u32 s{sT}, 5")
                e(f"s_cbranch_scc1 L_pr_{d}")
                e(f"s_setprio 0")
                lab(f"L_pr_{d}")
            for r in range(D - 1, 0, -1):
                e(f"s_cmp_gt_u32 s{sT}, {r}")
                e(f"s_cbranch_scc1 L_w{r}_{d}")
            for r in range(0, D):
                if r: lab(f"L_w{r}_{d}")
                e(f"s_waitcnt vmcnt({8*r})")
            e(f"s_cmp_lt_u32 s{sKD}, s{sN}")
            e(f"s_cselect_b32 s{sT3}, 1, 0")
        else:
            e(f"s_waitcnt vmcnt({8*D-8})")
        if d == 0 and stamps == 1:
            e(f"s_cmp_lg_u32 s{sK}, 0")
            e(f"s_cbranch_scc1 L_nost")
            stamp(6)
            lab("L_nost")
        for s in range(4):
            e(f"ds_read_b128 v[{vKF+4*s}:{vKF+4*s+3}], v{vKA+s} offset:{d*4096}")
        vs = vVS + d * 16
        for q in range(4):
            for hi in range(2):
                sel = sPHI if hi else sPLO
                ee = 2 * q + hi
                e(f"v_perm_b32 v{vVT+2*ee}, v{vs+4+q}, v{vs+q}, s{sel}")
                e(f"v_perm_b32 v{vVT+2*ee+1}, v{vs+12+q}, v{vs+8+q}, s{sel}")
        if ND:
            e(f"s_cmp_eq_u32 s{sT3}, 0")
            e(f"s_cbranch_scc1 L_nv_{d}")
        issueV(d, sOFFN)
        if ND: lab(f"L_nv_{d}")
        e(f"s_and_b32 s{sT0}, s{sINFO}, 0xffff")
        e(f"s_lshr_b32 s{sSEG}, s{sINFO}, 16")
        e(f"s_and_b32 s{sT}, s{sSEG}, 3")
        e(f"s_lshl_b32 s{sT}, s{sT}, 2")
        e(f"s_lshl_b64 s[{sMASK}:{sMASK+1}], s[{sPAT}:{sPAT+1}], s{sT}")
        e(f"s_cmp_eq_u32 s{sSEG}, 8")
        e(f"s_cselect_b64 s[{sMASK}:{sMASK+1}], -1, s[{sMASK}:{sMASK+1}]")
        e("s_waitcnt lgkmcnt(0)")
        if ND:
            e(f"s_cmp_eq_u32 s{sT3}, 0")
            e(f"s_cbranch_scc1 L_nk_{d}")
        issueK(d, sOFFN)
        if ND: lab(f"L_nk_{d}")
        if compute:
            e(f"s_bitcmp1_b32 s{sSEG}, 2")
            e(f"s_cbranch_scc1 L_g1_{d}")
            group(0)
            e(f"s_cmp_lt_u32 s{sSEG}, 4")
            e(f"s_cbranch_scc1 L_next_{d}")
            lab(f"L_g1_{d}")
            group(1)
            lab(f"L_next_{d}")
        e(f"s_add_u32 s{sK}, s{sK}, 1")
        e(f"s_add_u32 s{sKD}, s{sKD}, 1")
        e(f"s_cmp_ge_u32 s{sK}, s{sN}")
        if d < D - 1:
            e("s_cbranch_scc1 L_loopdone")
        else:
            e("s_cbranch_scc0 L_loop")
    lab("L_loopdone")
    stamp(7)
    if not epilogue:
        e("s_branch L_end")
    c("reduce l across g, write m/l and O to LDS")
    vACC2 = vKF; vTK = vETK
    e(f"v_mov_b32 v{vT2}, v{vLS}")
    e(f"v_mov_b32 v{vT}, v{vLS+1}")
    e(f"v_mov_b32 v{vS}, v{vM}")
    e(f"v_permlane32_swap_b32 v{vLS}, v{vT2}")
    e(f"v_permlane32_swap_b32 v{vLS+1}, v{vT}")
    e(f"v_add_f32 v{vLS}, v{vLS}, v{vT2}")
    e(f"v_add_f32 v{vLS+1}, v{vLS+1}, v{vT}")
    e(f"v_mov_b32 v{vT2}, v{vLS}")
    e(f"v_mov_b32 v{vT}, v{vLS+1}")
    e(f"v_mov_b32 v{vS+2}, v{vM+1}")
    e("s_waitcnt vmcnt(0)")
    e(f"v_permlane16_swap_b32 v{vLS}, v{vT2}")
    e(f"v_permlane16_swap_b32 v{vLS+1}, v{vT}")
    e(f"v_add_f32 v{vS+1}, v{vLS}, v{vT2}")
    e(f"v_add_f32 v{vS+3}, v{vLS+1}, v{vT}")
    for G, sg in ((0, sG0), (1, sG1)):
        e(f"s_cmp_eq_u32 s{sg}, 0")
        e(f"s_cbranch_scc1 L_skipw{G}")
        for ee in range(8):
            e(f"ds_write_b128 v{vEOW}, v[{vO+G*32+4*ee}:{vO+G*32+4*ee+3}] offset:{G*16*528+ee*16}")
        e(f"ds_write_b64 v{vEML}, v[{vS+2*G}:{vS+2*G+1}] offset:{128*G}")
        lab(f"L_skipw{G}")
    e(f"s_cmp_eq_u32 s{sW}, {NW}")
    e("s_cbranch_scc1 L_nonget")
    lab("L_nonon2")
    if DRY >= 0:
        e(f"s_cmp_eq_u32 s{sW}, {DRY}")
        e("s_cbranch_scc1 L_dry")
        lab("L_dryret2")
    e("s_waitcnt lgkmcnt(0)")
    e("s_barrier")
    if CUT == 1: e("s_branch L_end")
    e(f"s_cmp_eq_u32 s{sRD}, 0")
    e("s_cbranch_scc1 L_end")
    if CUT == 2: e("s_branch L_notk")
    e(f"s_cmp_lg_u32 s{sNTK}, 0")
    e("s_cbranch_scc1 L_notk")
    e(f"s_mov_b64 exec, 1")
    e(f"global_atomic_add_x2 v[{vTK}:{vTK+1}], v{vETA}, v[{vTK}:{vTK+1}], s[28:29] sc0 sc1")
    e(f"s_mov_b64 exec, -1")
    lab("L_notk")
    stamp(8)
    vML = vKF
    vOO = vO
    e(f"ds_read_b32 v{vS+1}, v{vENA}")
    for ws in range(8):
        e(f"ds_read_b64 v[{vML+2*ws}:{vML+2*ws+1}], v{vERM} offset:{ws*256}")
    for ws in range(8):
        va = vERO0 if ws < 4 else vERO1
        off = (ws & 3) * RS
        e(f"ds_read_b128 v[{vOO+8*ws}:{vOO+8*ws+3}], v{va} offset:{off}")
        e(f"ds_read_b128 v[{vOO+8*ws+4}:{vOO+8*ws+7}], v{va} offset:{off+16}")
        if ws == 2: e("s_waitcnt lgkmcnt(6)")
    vACC = vVS
    vPB = vVT
    gmap = [0, 1, 2, 4, 5, 6, 8, 9]
    vMM, vLL, vW = vS + 2, vS + 3, vLS
    e(f"v_max3_f32 v{vMM}, v{vML}, v{vML+2}, v{vML+4}")
    e(f"v_max3_f32 v{vMM}, v{vMM}, v{vML+6}, v{vML+8}")
    e(f"v_max3_f32 v{vMM}, v{vMM}, v{vML+10}, v{vML+12}")
    e(f"v_max_f32 v{vMM}, v{vMM}, v{vML+14}")
    e(f"v_mul_f32 v{vMM}, s{sC}, v{vMM}")
    for ws in range(8):
        e(f"v_fma_f32 v{vML+2*ws}, v{vML+2*ws}, s{sC}, -v{vMM}")
    for ws in range(8):
        e(f"v_exp_f32 v{vML+2*ws}, v{vML+2*ws}")
    e(f"v_readfirstlane_b32 s{sNON}, v{vS+1}")
    e(f"v_mul_f32 v{vLL}, v{vML}, v{vML+1}")
    for ws in range(1, 8):
        e(f"v_fmac_f32 v{vLL}, v{vML+2*ws}, v{vML+2*ws+1}")
    e(f"v_mov_b32 v{vPB+3}, v{vS+1}")
    e(f"v_max_f32 v{vAL}, 0x{f2u(1e-30):08x}, v{vLL}")
    e(f"v_log_f32 v{vLL}, v{vAL}")
    e(f"v_rcp_f32 v{vAL}, v{vAL}")
    e(f"v_mov_b32 v{vPB+7}, v{vS+1}")
    e(f"v_mov_b32 v{vPB+11}, v{vS+1}")
    e(f"v_add_f32 v{vPB+10}, v{vMM}, v{vLL}")
    for ws in range(8):
        e(f"v_mul_f32 v{vML+2*ws}, v{vML+2*ws}, v{vAL}")
    e("s_waitcnt lgkmcnt(0)")
    for i in range(4):
        e(f"v_pk_mul_f32 v[{vACC+2*i}:{vACC+2*i+1}], v[{vOO+2*i}:{vOO+2*i+1}], v[{vML}:{vML+1}] op_sel_hi:[1,0]")
    for ws in range(1, 7):
        for i in range(4):
            e(f"v_pk_fma_f32 v[{vACC+2*i}:{vACC+2*i+1}], v[{vOO+8*ws+2*i}:{vOO+8*ws+2*i+1}], v[{vML+2*ws}:{vML+2*ws+1}], v[{vACC+2*i}:{vACC+2*i+1}] op_sel_hi:[1,0,1]")
    for i in range(8):
        e(f"v_fma_f32 v{vPB+gmap[i]}, v{vOO+56+i}, v{vML+14}, v{vACC+i}")
    stamp(9)
    if CUT == 2: e("s_branch L_end")
    def publish():
        for g in range(3):
            e(f"buffer_store_dwordx4 v[{vPB+4*g}:{vPB+4*g+3}], v{vEX16}, s[{sR1}:{sR1+3}], s{sOWN} offen offset:{1024*g} {hs}")
    if UP: publish()
    e(f"s_cmp_lg_u32 s{sMUL}, 0")
    e("s_cbranch_scc1 L_multi")
    e("s_waitcnt vmcnt(3)" if UP else "s_waitcnt vmcnt(0)")
    lab("L_havetk")
    e(f"v_readfirstlane_b32 s{sT2}, v{vTK}")
    e(f"v_readfirstlane_b32 s{sT2+1}, v{vTK+1}")
    e(f"v_mov_b32 v{vW}, 1.0")
    e(f"s_lshr_b64 s[{sT2}:{sT2+1}], s[{sT2}:{sT2+1}], s{sHI}")
    e(f"s_and_b32 s{sT}, s{sT2}, 0xff")
    e(f"s_cmp_eq_u32 s{sT}, s{sEXP}")
    e("s_cbranch_scc0 L_end" if UP else "s_cbranch_scc0 L_publish")
    if CUT == 3: e("s_branch L_end")
    e(f"s_cmp_eq_u32 s{sGN}, 0")
    e("s_cbranch_scc1 L_final")
    c("last arriver: gather other partials (validated by tag); slots NB-N..NB-1 are live")
    def ladder(tag):
        def rec(lo, hi):
            if lo == hi:
                e(f"s_branch {tag}_{NB-lo}")
                return
            mid = (lo + hi + 1) // 2
            l = f"{tag}_t{lo}_{hi}"
            e(f"s_cmp_ge_u32 s{sGN}, {mid}")
            if mid == hi:
                e(f"s_cbranch_scc1 {tag}_{NB-hi}")
                rec(lo, mid - 1)
            else:
                e(f"s_cbranch_scc1 {l}")
                rec(lo, mid - 1)
                lab(l)
                rec(mid, hi)
        rec(1, NB)
    if SL:
        vTmin, vTmax = vT, vT2
        vW2 = vLS + 1
        lab("L_gather")
        ladder("L_gs")
        order = list(range(1, NB + 1))
        order.remove(8); order.append(8)
        for n in order:
            js = list(range(NB - n, NB))
            lab(f"L_gs_{NB-n}")
            for j in js:
                b0 = vG0 + j * 12
                e(f"buffer_load_dwordx4 v[{b0+8}:{b0+11}], v{vEX16}, s[{sR1}:{sR1+3}], s{sGO+j} offen offset:2048 {hl}")
            for j in js:
                b0 = vG0 + j * 12
                for g in range(2):
                    e(f"buffer_load_dwordx4 v[{b0+4*g}:{b0+4*g+3}], v{vEX16}, s[{sR1}:{sR1+3}], s{sGO+j} offen offset:{1024*g} {hl}")
            e(f"v_mov_b32 v{vMN}, v{vPB+10}")
            e(f"v_mov_b32 v{vTmin}, s{sNON}")
            e(f"v_mov_b32 v{vTmax}, s{sNON}")
            e(f"s_waitcnt vmcnt({2*n})")
            k = 0
            while k < n:
                b0 = vG0 + js[k] * 12
                if k + 1 < n:
                    b1 = b0 + 12
                    e(f"v_max3_f32 v{vMN}, v{vMN}, v{b0+10}, v{b1+10}")
                    e(f"v_min3_u32 v{vTmin}, v{vTmin}, v{b0+11}, v{b1+11}")
                    e(f"v_max3_u32 v{vTmax}, v{vTmax}, v{b0+11}, v{b1+11}")
                    k += 2
                else:
                    e(f"v_max_f32 v{vMN}, v{vMN}, v{b0+10}")
                    e(f"v_min_u32 v{vTmin}, v{vTmin}, v{b0+11}")
                    e(f"v_max_u32 v{vTmax}, v{vTmax}, v{b0+11}")
                    k += 1
            e(f"v_cmp_ne_u32 vcc, v{vTmin}, v{vTmax}")
            e(f"v_sub_f32 v{vAL}, v{vPB+10}, v{vMN}")
            e(f"v_exp_f32 v{vAL}, v{vAL}")
            e(f"s_cbranch_vccnz L_gs_{NB-n}")
            for j in js:
                b0 = vG0 + j * 12
                e(f"v_sub_f32 v{b0+10}, v{b0+10}, v{vMN}")
            for j in js:
                b0 = vG0 + j * 12
                e(f"v_exp_f32 v{b0+10}, v{b0+10}")
            for i in range(8):
                e(f"v_mul_f32 v{vACC2+i}, v{vAL}, v{vPB+gmap[i]}")
            e(f"v_mul_f32 v{vW2}, v{vAL}, v{vW}")
            for j in js:
                b0 = vG0 + j * 12
                e(f"v_add_f32 v{vW2}, v{vW2}, v{b0+10}")
                e(f"v_pk_fma_f32 v[{vACC2+6}:{vACC2+7}], v[{b0+8}:{b0+9}], v[{b0+10}:{b0+11}], v[{vACC2+6}:{vACC2+7}] op_sel_hi:[1,0,1]")
            e(f"v_rcp_f32 v{vAL}, v{vW2}")
            for j in js:
                b0 = vG0 + j * 12
                e(f"s_waitcnt vmcnt({2*(NB-1-j)})")
                e(f"v_min3_u32 v{vTmin}, v{vTmin}, v{b0+3}, v{b0+7}")
                e(f"v_max3_u32 v{vTmax}, v{vTmax}, v{b0+3}, v{b0+7}")
                e(f"v_pk_fma_f32 v[{vACC2}:{vACC2+1}], v[{b0}:{b0+1}], v[{b0+10}:{b0+11}], v[{vACC2}:{vACC2+1}] op_sel_hi:[1,0,1]")
                e(f"v_fmac_f32 v{vACC2+2}, v{b0+10}, v{b0+2}")
                e(f"v_fmac_f32 v{vACC2+3}, v{b0+10}, v{b0+4}")
                e(f"v_fmac_f32 v{vACC2+4}, v{b0+10}, v{b0+5}")
                e(f"v_fmac_f32 v{vACC2+5}, v{b0+10}, v{b0+6}")
            e(f"v_cmp_ne_u32 vcc, v{vTmin}, v{vTmax}")
            e(f"s_cmp_lg_u64 s[{sCM}:{sCM+1}], 0")
            e("s_nop 0")
            e(f"s_cbranch_vccnz L_gs_{NB-n}")
            if n == NB: e("s_cbranch_scc1 L_gather2")
            if n != order[-1]: e("s_branch L_fin2")
    else:
        lab("L_gather")
        stamp(11)
        ladder("L_ga")
        for j in range(NB):
            b0 = vG0 + j * 12
            lab(f"L_ga_{j}")
            e(f"buffer_load_dwordx4 v[{b0+8}:{b0+11}], v{vEX16}, s[{sR1}:{sR1+3}], s{sGO+j} offen offset:2048 {hl}")
        ladder("L_gb")
        for j in range(NB):
            b0 = vG0 + j * 12
            lab(f"L_gb_{j}")
            for g in range(2):
                e(f"buffer_load_dwordx4 v[{b0+4*g}:{b0+4*g+3}], v{vEX16}, s[{sR1}:{sR1+3}], s{sGO+j} offen offset:{1024*g} {hl}")
        vTmin, vTmax = vT, vT2
        vW2 = vLS + 1
        lab("L_gchk")
        e(f"v_mov_b32 v{vMN}, v{vPB+10}")
        e(f"v_mov_b32 v{vTmin}, s{sNON}")
        e(f"v_mov_b32 v{vTmax}, s{sNON}")
        ladder("L_gc")
        for j in range(NB):
            b0 = vG0 + j * 12
            lab(f"L_gc_{j}")
            c("entry j: all lse granules landed when <= 2*(NB-j) loads remain; later entries are no-ops") if j == 0 else None
            e(f"s_waitcnt vmcnt({2*(NB-j)})")
            e(f"s_branch L_gd_{j}")
        for j in range(NB):
            b0 = vG0 + j * 12
            lab(f"L_gd_{j}")
            e(f"v_max_f32 v{vMN}, v{vMN}, v{b0+10}")
            e(f"v_min_u32 v{vTmin}, v{vTmin}, v{b0+11}")
            e(f"v_max_u32 v{vTmax}, v{vTmax}, v{b0+11}")
        stamp(12)
        if EC: e(f"v_cmp_ne_u32 vcc, v{vTmin}, v{vTmax}")
        e(f"v_sub_f32 v{vAL}, v{vPB+10}, v{vMN}")
        e(f"v_exp_f32 v{vAL}, v{vAL}")
        e(("s_cbranch_vccnz L_retry1" if TRY else "s_cbranch_vccnz L_retry") if EC else "s_nop 0")
        for i in range(8):
            e(f"v_mul_f32 v{vACC2+i}, v{vAL}, v{vPB+gmap[i]}")
        e(f"v_mul_f32 v{vW2}, v{vAL}, v{vW}")
        ladder("L_ge")
        for j in range(NB):
            b0 = vG0 + j * 12
            lab(f"L_ge_{j}")
            e(f"v_sub_f32 v{b0+10}, v{b0+10}, v{vMN}")
            e(f"v_exp_f32 v{b0+10}, v{b0+10}")
            e(f"s_waitcnt vmcnt({2*(NB-1-j)})")
            e(f"v_min3_u32 v{vTmin}, v{vTmin}, v{b0+3}, v{b0+7}")
            e(f"v_max3_u32 v{vTmax}, v{vTmax}, v{b0+3}, v{b0+7}")
            e(f"v_add_f32 v{vW2}, v{vW2}, v{b0+10}")
            e(f"v_pk_fma_f32 v[{vACC2}:{vACC2+1}], v[{b0}:{b0+1}], v[{b0+10}:{b0+11}], v[{vACC2}:{vACC2+1}] op_sel_hi:[1,0,1]")
            e(f"v_fmac_f32 v{vACC2+2}, v{b0+10}, v{b0+2}")
            e(f"v_fmac_f32 v{vACC2+3}, v{b0+10}, v{b0+4}")
            e(f"v_fmac_f32 v{vACC2+4}, v{b0+10}, v{b0+5}")
            e(f"v_fmac_f32 v{vACC2+5}, v{b0+10}, v{b0+6}")
            e(f"v_pk_fma_f32 v[{vACC2+6}:{vACC2+7}], v[{b0+8}:{b0+9}], v[{b0+10}:{b0+11}], v[{vACC2+6}:{vACC2+7}] op_sel_hi:[1,0,1]")
        e(f"v_cmp_ne_u32 vcc, v{vTmin}, v{vTmax}")
        e(f"v_rcp_f32 v{vAL}, v{vW2}")
        e(f"s_cmp_lg_u64 s[{sCM}:{sCM+1}], 0")
        e("s_cbranch_vccnz L_retry")
        e("s_cbranch_scc1 L_gather2")
    lab("L_fin2")
    for i in range(4):
        e(f"v_pk_mul_f32 v[{vACC2+2*i}:{vACC2+2*i+1}], v[{vACC2+2*i}:{vACC2+2*i+1}], v[{vAL}:{vAL+1}] op_sel_hi:[1,0]")
    for r in range(4):
        e(f"v_cvt_pk_bf16_f32 v{vACC2+r}, v{vACC2+r}, v{vACC2+4+r}")
    if CUT == 4: e("s_branch L_end")
    if TR:
        a = vACC2; b = vACC2 + 4; cc = vACC2 + 8
        sw1 = "quad_perm:[1,0,3,2] row_mask:0xf bank_mask:0xf"
        sw2 = "quad_perm:[2,3,0,1] row_mask:0xf bank_mask:0xf"
        e("s_mov_b32 vcc_lo, 0x55555555")
        e("s_mov_b32 vcc_hi, 0x55555555")
        e(f"v_cndmask_b32_dpp v{b}, v{a+1}, v{a}, vcc {sw1}")
        e(f"v_cndmask_b32_dpp v{b+2}, v{a+3}, v{a+2}, vcc {sw1}")
        e("s_not_b64 vcc, vcc")
        e(f"v_cndmask_b32_dpp v{b+1}, v{a}, v{a+1}, vcc {sw1}")
        e(f"v_cndmask_b32_dpp v{b+3}, v{a+2}, v{a+3}, vcc {sw1}")
        e("s_mov_b32 vcc_lo, 0x33333333")
        e("s_mov_b32 vcc_hi, 0x33333333")
        e(f"v_cndmask_b32_dpp v{cc}, v{b+2}, v{b}, vcc {sw2}")
        e(f"v_cndmask_b32_dpp v{cc+1}, v{b+3}, v{b+1}, vcc {sw2}")
        e("s_not_b64 vcc, vcc")
        e(f"v_cndmask_b32_dpp v{cc+2}, v{b}, v{b+2}, vcc {sw2}")
        e(f"v_cndmask_b32_dpp v{cc+3}, v{b+1}, v{b+3}, vcc {sw2}")
        e(f"buffer_store_dwordx4 v[{cc}:{cc+3}], v{vEX16}, s[{sR2}:{sR2+3}], s{sOUT} offen {op}")
    else:
        for r in range(4):
            e(f"buffer_store_dword v{vACC2+r}, v{vEOA}, s[{sR2}:{sR2+3}], s{sOUT} offen offset:{16*r} {op}")
    if DRY >= 0: e("s_cbranch_execz L_dryret")
    stamp(13)
    if stamps: e("s_waitcnt vmcnt(0)")
    stamp(14)
    lab("L_end")
    stampflush()
    lab("L_end2")
    e("s_endpgm")
    c("---- side paths")
    if TRY:
        lab("L_retry1")
        c("reload only the partials whose last-written granule is not there yet")
        e(f"s_add_u32 s{sK}, s{sK}, 1")
        e(f"s_cmp_lt_u32 s{sK}, 0x200000")
        e("s_cbranch_scc0 L_end")
        ladder("L_gr")
        for j in range(NB):
            b0 = vG0 + j * 12
            lab(f"L_gr_{j}")
            e(f"v_cmp_ne_u32 vcc, s{sNON}, v{b0+11}")
            e(f"s_cbranch_vccz L_gr_{j+1}")
            for g in (2, 0, 1):
                e(f"buffer_load_dwordx4 v[{b0+4*g}:{b0+4*g+3}], v{vEX16}, s[{sR1}:{sR1+3}], s{sGO+j} offen offset:{1024*g} {hl}")
        lab(f"L_gr_{NB}")
        e("s_waitcnt vmcnt(0)")
        e("s_branch L_gchk")
    lab("L_retry")
    c("a partial of a workgroup that already holds a ticket is still in flight: read again (bounded)")
    e(f"s_add_u32 s{sK}, s{sK}, 1")
    e(f"s_cmp_lt_u32 s{sK}, 0x200000")
    e("s_cbranch_scc1 L_gather")
    e("s_branch L_end")
    if DRY >= 0:
        c("instruction warm-up: one early wave walks the tail code with every lane off (valid SRDs and addresses)")
        sv = sC0
        lab("L_dry")
        e(f"s_mov_b32 s{sv}, s{sMUL}")
        e(f"s_mov_b32 s{sv+1}, s{sEXP}")
        e(f"s_mov_b64 s[{sv+2}:{sv+3}], s[{sCM}:{sCM+1}]")
        e(f"s_mov_b32 s{sv+4}, s{sGN}")
        e(f"s_mov_b32 s{sMUL}, 0")
        e(f"s_mov_b32 s{sEXP}, 1")
        e(f"s_mov_b64 s[{sCM}:{sCM+1}], 0")
        e(f"s_max_u32 s{sGN}, s{sGN}, 1")
        e("s_mov_b64 exec, 0")
        e("s_branch L_notk")
        lab("L_dryret")
        e("s_mov_b64 exec, -1")
        e(f"s_mov_b32 s{sMUL}, s{sv}")
        e(f"s_mov_b32 s{sEXP}, s{sv+1}")
        e(f"s_mov_b64 s[{sCM}:{sCM+1}], s[{sv+2}:{sv+3}]")
        e(f"s_mov_b32 s{sGN}, s{sv+4}")
        e("s_branch L_dryret2")
    lab("L_nonget")
    e(f"s_load_dword s{sT}, s[28:29], 128")
    e("s_waitcnt lgkmcnt(0)")
    e(f"s_cmp_lg_u32 s{sT}, 0")
    e("s_cbranch_scc1 L_nonput")
    nonce_req()
    e("s_waitcnt vmcnt(0)")
    e(f"v_readfirstlane_b32 s{sT}, v{vNON}")
    e(f"s_cmp_eq_u32 s{sT}, 0")
    e(f"s_cselect_b32 s{sT}, s{sCAND}, s{sT}")
    lab("L_nonput")
    e(f"v_mov_b32 v{vT}, s{sT}")
    e(f"ds_write_b32 v{vENA}, v{vT}")
    e("s_branch L_nonon2")
    lab("L_publish")
    e(f"s_cmp_lg_u32 s{sMUL}, 0")
    e("s_cbranch_scc1 L_end")
    publish()
    stamp(10)
    e("s_branch L_end")
    lab("L_final")
    for i in range(8):
        e(f"v_mov_b32 v{vACC2+i}, v{vPB+gmap[i]}")
    e(f"v_mov_b32 v{vAL}, 1.0")
    e("s_branch L_fin2")
    lab("L_multi")
    c("wave 0 took the tickets of all 8 batches: share them through LDS")
    if not UP: publish()
    e(f"v_mov_b32 v{vS}, {PSL+40}")
    e(f"s_cmp_lg_u32 s{sW}, 0")
    e("s_cbranch_scc1 L_multi2")
    e("s_waitcnt vmcnt(3)")
    e("s_mov_b64 exec, 1")
    e(f"ds_write_b64 v{vS}, v[{vTK}:{vTK+1}]")
    e("s_mov_b64 exec, -1")
    e("s_waitcnt lgkmcnt(0)")
    lab("L_multi2")
    e("s_barrier")
    e(f"ds_read_b64 v[{vTK}:{vTK+1}], v{vS}")
    e("s_waitcnt lgkmcnt(0)")
    e("s_branch L_havetk")
    lab("L_gather2")
    for i in range(8):
        e(f"v_mov_b32 v{vPB+gmap[i]}, v{vACC2+i}")
    e(f"v_mov_b32 v{vPB+10}, v{vMN}")
    e(f"v_mov_b32 v{vW}, v{vW2}")
    goffs()
    e("s_branch L_gather")
    if NSPEC:
        lab("L_mispec")
        stamp(15)
        e("s_waitcnt vmcnt(0)")
        for k in range(2 if S2 else NSPEC):
            e(f"s_add_u32 m0, s{sLDSB}, {k*4096}")
            e("s_nop 0")
            issueK(k, sRL + k)
            issueV(k, sRL + k)
        e("s_branch L_specok")
    lab("L_zq")
    c("ctx<=0: reference softmax is uniform over all positions -> zero those Q rows")
    for b in range(8):
        e(f"s_bitcmp1_b32 s{sZQ}, {b}")
        e(f"s_cbranch_scc0 L_zq{b}")
        e(f"s_lshl_b64 exec, s[{sPAT}:{sPAT+1}], {4*(b&3)}")
        for i in range(16):
            e(f"v_mov_b32 v{vQ+(b>>2)*16+i}, 0")
        lab(f"L_zq{b}")
    e("s_mov_b64 exec, -1")
    e("s_branch L_noz")
    o.append('.section .rodata,"a"')
    o.append(".p2align 6")
    o.append(f".amdhsa_kernel {NAME}_kernel")
    o.append(f"  .amdhsa_next_free_vgpr {NV}")
    o.append("  .amdhsa_next_free_sgpr 102")
    o.append(f"  .amdhsa_accum_offset {(NV+3)//4*4}")
    o.append("  .amdhsa_group_segment_fixed_size 0")
    o.append("  .amdhsa_kernarg_size 64")
    o.append("  .amdhsa_user_sgpr_count 2")
    o.append("  .amdhsa_user_sgpr_kernarg_segment_ptr 1")
    o.append("  .amdhsa_system_sgpr_workgroup_id_x 1")
    o.append(".end_amdhsa_kernel")
    return "\n".join(o) + "\n"

if __name__ == "__main__":
    kw = {}
    out = sys.argv[1]
    for a in sys.argv[2:]:
        k, v = a.split("=")
        kw[k] = v if k in ("ldpol", "hs", "hl", "op", "GIVE", "DST") else (float(v) if k.startswith("PHI") else int(v))
    open(out, "w").write(gen(**kw))
```
